```python
import torch

def _softmax(x, axis=-1):
    return torch.softmax(x, dim=axis)
def _gelu(x):
    return torch.nn.functional.gelu(x, approximate="tanh")
def _silu(x):
    return torch.nn.functional.silu(x)
def _sigmoid(x):
    return torch.sigmoid(x)
def _layernorm(x, axis=-1, eps=1e-5):
    m = x.mean(dim=axis, keepdim=True)
    v = x.var(dim=axis, keepdim=True, unbiased=False)
    return (x - m) / torch.sqrt(v + eps)
def _scatter_add(tgt, idx, src, axis=0):
    return tgt.clone().index_add_(axis, idx, src)
def _segment_sum(src, seg, n):
    out = torch.zeros((n,) + src.shape[1:], dtype=src.dtype)
    return out.index_add_(0, seg, src)
def _pad(x, pw):
    flat = tuple(v for pair in reversed(pw) for v in pair)
    return torch.nn.functional.pad(x, flat)

kernel_name = 'gated_mix__sliding_local_dilated__dense_activation_squared_relu__prompt'

def setup_inputs():

    _w = (lambda a: (lambda t: t.to(torch.bfloat16) if t.is_floating_point() else t)(torch.as_tensor(a)))
    def _A_setup():
        B, S, D = 1, 2048, 640
        return {
            "x": _w((lambda *s: torch.randn(*s, dtype=torch.bfloat16) * 0.05)(B, S, D)),
            "wqkv": _w((lambda *s: torch.randn(*s, dtype=torch.bfloat16) * 0.8)(D, 3 * D)),
            "wo": _w((lambda *s: torch.randn(*s, dtype=torch.bfloat16) * 0.05)(D, D)),
        }
    _A_in = _A_setup()

    def _B_setup():
        B, S, D, F = 1, 2048, 640, 1728
        return {
            "x": _w((lambda *s: torch.randn(*s, dtype=torch.bfloat16) * 0.05)(B, S, D)),
            "w1": _w((lambda *s: torch.randn(*s, dtype=torch.bfloat16) * 0.2)(D, F)),
            "b1": _w((lambda *s: torch.randn(*s, dtype=torch.bfloat16) * 0.2)(F)),
            "w2": _w((lambda *s: torch.randn(*s, dtype=torch.bfloat16) * 0.2)(F, D)),
            "b2": _w((lambda *s: torch.randn(*s, dtype=torch.bfloat16) * 0.2)(D)),
        }
    _B_in = _B_setup()

    return {
        "A_x": _A_in["x"],
        "A_wqkv": _A_in["wqkv"],
        "A_wo": _A_in["wo"],
        "B_x": _B_in["x"],
        "B_w1": _B_in["w1"],
        "B_b1": _B_in["b1"],
        "B_w2": _B_in["w2"],
        "B_b2": _B_in["b2"],
        "gate_w": _w((lambda *s: torch.randn(*s, dtype=torch.bfloat16) * 0.05)(640) * 16.0),
    }

def reference(A_x, A_wqkv, A_wo, B_x, B_w1, B_b1, B_w2, B_b2, gate_w):
    def _A_ref(x, wqkv, wo):
        B, S, D = x.shape
        H = 32; Dh = D // H
        W, dil = 8, 2
        qkv = (lambda x, *d: x.permute(*d))((x @ wqkv).reshape(B, S, 3, H, Dh), 2, 0, 3, 1, 4)
        q, k, v = qkv[0], qkv[1], qkv[2]
        scale = Dh ** -0.5
        pos = torch.arange(S)
        off = torch.arange(W) * dil
        idx = pos[:, None] - off[None, :]
        mask = idx >= 0
        idx_c = torch.where(mask, idx, 0).reshape(-1)
        kg = k[:, :, idx_c, :].reshape(B, H, S, W, Dh)
        vg = v[:, :, idx_c, :].reshape(B, H, S, W, Dh)
        logits = torch.einsum("bhsd,bhswd->bhsw", q, kg) * scale
        logits = torch.where(mask[None, None, :, :], logits, -1e9)
        attn = _softmax(logits, axis=-1)
        o = torch.einsum("bhsw,bhswd->bhsd", attn, vg)
        return (lambda x, *d: x.permute(*d))(o, 0, 2, 1, 3).reshape(B, S, D) @ wo

    def _B_ref(x, w1, b1, w2, b2):
        h = torch.einsum("bsd,df->bsf", x, w1) + b1
        zero = torch.zeros_like(h)
        r = torch.where(h > zero, h, zero)
        h = r * r
        out = torch.einsum("bsf,fd->bsd", h, w2) + b2
        return out

    x = A_x
    g = _sigmoid((x * gate_w).sum(-1, keepdims=True))
    a = _A_ref(x, A_wqkv, A_wo)
    b = _B_ref(x, B_w1, B_b1, B_w2, B_b2)
    return g * a + (1 - g) * b
```

```python
import re

TRANS = ("v_exp_f32", "v_log_f32", "v_rcp_f32", "v_rsq_f32", "v_sqrt_f32", "v_sin_f32", "v_cos_f32", "v_rcp_iflag_f32")
NO_DST_S = ("s_cmp_", "s_cbranch", "s_waitcnt", "s_barrier", "s_nop", "s_branch", "s_endpgm", "s_setprio", "s_bitcmp",
            "s_sleep", "s_setpc", "s_sethalt", "s_setreg")

def regs_of(tok):
    tok = tok.strip()
    neg = tok.lstrip("-")
    if neg.startswith("abs(") or neg.startswith("|"):
        neg = neg.replace("abs(", "").replace(")", "").replace("|", "")
    tok = neg
    m = re.fullmatch(r"([vas])(\d+)", tok)
    if m:
        return [(m.group(1), int(m.group(2)))]
    m = re.fullmatch(r"([vas])\[(\d+):(\d+)\]", tok)
    if m:
        return [(m.group(1), i) for i in range(int(m.group(2)), int(m.group(3)) + 1)]
    if tok == "vcc":
        return [("x", "vcc")]
    if tok == "exec":
        return [("x", "exec")]
    if tok == "m0":
        return [("x", "m0")]
    return []

class Ins:
    def __init__(self, text):
        self.text = text
        t = text.split(";")[0].strip()
        self.is_label = t.endswith(":")
        self.is_dir = t.startswith(".") and not self.is_label
        self.empty = (t == "")
        self.defs = set(); self.uses = set(); self.kind = None; self.op = None
        self.srcC = set(); self.srcAB = set(); self.storedata = set()
        self.mods = ""
        if self.is_label:
            self.label = t[:-1]; return
        if self.is_dir or self.empty:
            return
        parts = t.split(None, 1)
        op = parts[0]; self.op = op
        rest = parts[1] if len(parts) > 1 else ""
        ops = []; cur = ""; depth = 0
        for ch in rest:
            if ch == "[": depth += 1
            if ch == "]": depth -= 1
            if ch == "," and depth == 0:
                ops.append(cur.strip()); cur = ""
            else:
                cur += ch
        if cur.strip(): ops.append(cur.strip())
        if ops:
            last = ops[-1].split()
            ops[-1] = last[0]
            self.mods = " ".join(last[1:])
        self.ops = ops
        R = [regs_of(o) for o in ops]
        base = re.sub(r"_(e32|e64|dpp|sdwa)$", "", op)
        self.base = base
        if op.startswith("v_mfma"):
            self.kind = "mfma"
            self.defs |= set(R[0]); self.srcAB = set(R[1]) | set(R[2]); self.srcC = set(R[3]) if len(R) > 3 else set()
            self.uses = self.srcAB | self.srcC
            self.passes = 8 if "32x32" in op else 4
        elif op.startswith("v_"):
            self.kind = "valu"
            if base.startswith("v_cmp"):
                self.defs |= set(R[0]); [self.uses.update(r) for r in R[1:]]
            elif base in ("v_add_co_u32", "v_sub_co_u32", "v_addc_co_u32", "v_subb_co_u32"):
                self.defs |= set(R[0]) | set(R[1]); [self.uses.update(r) for r in R[2:]]
            elif base.startswith("v_permlane") and "swap" in base:
                self.defs |= set(R[0]) | set(R[1]); self.uses |= set(R[0]) | set(R[1])
            else:
                self.defs |= set(R[0]); [self.uses.update(r) for r in R[1:]]
                if base in ("v_fmac_f32", "v_dot2c_f32_bf16", "v_pk_fmac_f16", "v_writelane_b32") or "dpp" in op or "row_" in self.mods or "quad_perm" in self.mods:
                    self.uses |= set(R[0])
            self.dpp = ("dpp" in op) or ("row_" in self.mods) or ("quad_perm" in self.mods)
            self.trans = base in TRANS
        elif op.startswith("ds_"):
            self.kind = "ds"
            if op.startswith("ds_read") or op.startswith("ds_bpermute") or op.startswith("ds_permute") or op.startswith("ds_swizzle"):
                self.defs |= set(R[0]); [self.uses.update(r) for r in R[1:]]
            else:
                [self.uses.update(r) for r in R]
        elif op.startswith("buffer_") or op.startswith("global_"):
            self.kind = "vmem"
            allm = (self.mods + " " + " ".join(ops)).split()
            if op in ("buffer_inv", "buffer_wbl2"):
                pass
            elif op.startswith("buffer_load") and "lds" in allm:
                [self.uses.update(r) for r in R]; self.uses.add(("x", "m0")); self.ldsdma = True
            elif op.startswith("global_load_lds"):
                [self.uses.update(r) for r in R]; self.uses.add(("x", "m0")); self.ldsdma = True
            elif "_load" in op:
                self.defs |= set(R[0]); [self.uses.update(r) for r in R[1:]]
            elif "_store" in op:
                [self.uses.update(r) for r in R]
                data = R[0] if op.startswith("buffer_") else R[1]
                if op.endswith("x4") or op.endswith("x3"):
                    self.storedata = set(data)
            elif "_atomic" in op:
                [self.uses.update(r) for r in R]
                if "sc0" in allm:
                    self.defs |= set(R[0])
        elif op.startswith("s_"):
            if op.startswith("s_load") or op.startswith("s_memtime") or op.startswith("s_memrealtime"):
                self.kind = "smem"
                self.defs |= set(R[0]); [self.uses.update(r) for r in R[1:]]
            else:
                self.kind = "salu"
                if any(op.startswith(p) for p in NO_DST_S):
                    [self.uses.update(r) for r in R]
                else:
                    if R: self.defs |= set(R[0])
                    [self.uses.update(r) for r in R[1:]]
                    if op in ("s_and_saveexec_b64", "s_or_saveexec_b64"):
                        self.defs.add(("x", "exec"))
        else:
            raise ValueError("unknown instruction: " + text)

    def states(self):
        if self.op == "s_nop":
            return int(self.ops[0], 0) + 1
        return 1

def is_v(r): return r[0] in "va"
def is_s(r): return r[0] == "s" or r == ("x", "vcc")

def need(P, C):
    n = 0
    if P.kind == "valu":
        pv = {r for r in P.defs if is_v(r)}
        ps = {r for r in P.defs if is_s(r)}
        if C.kind == "mfma" and pv & C.uses: n = max(n, 2)
        if C.kind == "vmem" and ps & C.uses: n = max(n, 5)
        if C.kind == "valu":
            if ps & C.uses:
                n = max(n, 4 if C.base in ("v_readlane_b32", "v_writelane_b32") else 2)
            if C.base in ("v_readfirstlane_b32", "v_readlane_b32") and pv & C.uses: n = max(n, 1)
            if (C.dpp or C.base.startswith("v_permlane")) and pv & C.uses: n = max(n, 2)
            if P.trans and not C.trans and pv & C.uses: n = max(n, 1)
            if P.base.startswith("v_dot2") and (pv & (C.uses | C.defs)):
                if not (C.base == P.base): n = max(n, 3)
        if P.trans and C.kind in ("vmem", "ds", "mfma") and pv & C.uses: n = max(n, 2)
    if P.kind == "mfma":
        d = P.defs
        big = 12 if P.passes == 8 else 8
        if C.kind == "mfma":
            if d & C.srcAB: n = max(n, big)
            if d & C.srcC:
                if not (d == C.srcC and P.passes == C.passes): n = max(n, 10 if P.passes == 8 else 6)
            if d & C.defs and not (d == C.defs and d == C.srcC and P.passes == C.passes):
                if not (d & C.srcC): n = max(n, big)
        elif C.kind in ("valu", "vmem", "ds"):
            if d & (C.uses | C.defs): n = max(n, big)
        if C.kind == "valu" and P.srcC & C.defs: n = max(n, 7 if P.passes == 8 else 3)
    if P.kind == "vmem" and P.storedata:
        if P.storedata & C.defs: n = max(n, 2)
    if P.kind == "salu" and ("x", "m0") in P.defs:
        if C.kind == "vmem" and getattr(C, "ldsdma", False): n = max(n, 1)
    return n

MAXD = 13

def pad_hazards(lines):
    inserted = 0
    while True:
        ins = [Ins(l) for l in lines]
        idx = [i for i, x in enumerate(ins) if not (x.is_label or x.is_dir or x.empty)]
        labels = {x.label: i for i, x in enumerate(ins) if x.is_label}
        n = len(ins)
        preds = {i: [] for i in range(n + 1)}
        for i, x in enumerate(ins):
            real = not (x.is_label or x.is_dir or x.empty)
            falls = True
            if real and x.op in ("s_branch", "s_endpgm", "s_setpc_b64"): falls = False
            if falls: preds[i + 1].append(i)
            if real and (x.op == "s_branch" or x.op.startswith("s_cbranch")):
                tgt = x.ops[0]
                if tgt in labels: preds[labels[tgt]].append(i)
        fix = None
        for i in idx:
            C = ins[i]
            if C.kind == "salu" and not C.uses: continue
            worst = 0
            stack = [(p, 0) for p in preds[i]]
            seen = set()
            while stack:
                j, dist = stack.pop()
                if (j, dist) in seen: continue
                seen.add((j, dist))
                P = ins[j]
                if P.is_label or P.is_dir or P.empty:
                    for p in preds[j]: stack.append((p, dist))
                    continue
                k = need(P, C)
                if k > dist: worst = max(worst, k - dist)
                nd = dist + P.states()
                if nd < MAXD:
                    for p in preds[j]: stack.append((p, nd))
            if worst > 0:
                fix = (i, worst); break
        if fix is None:
            return lines, inserted
        i, w = fix
        lines.insert(i, "    s_nop %d" % (w - 1))
        inserted += 1

def pad_hazards_fast(lines):
    total = 0
    while True:
        ins = [Ins(l) for l in lines]
        labels = {x.label: i for i, x in enumerate(ins) if x.is_label}
        n = len(ins)
        preds = {i: [] for i in range(n + 1)}
        for i, x in enumerate(ins):
            real = not (x.is_label or x.is_dir or x.empty)
            falls = True
            if real and x.op in ("s_branch", "s_endpgm", "s_setpc_b64"): falls = False
            if falls: preds[i + 1].append(i)
            if real and (x.op == "s_branch" or x.op.startswith("s_cbranch")):
                tgt = x.ops[0]
                if tgt in labels: preds[labels[tgt]].append(i)
        fixes = []
        last_fix = -100
        for i, C in enumerate(ins):
            if C.is_label or C.is_dir or C.empty: continue
            if i - last_fix < 40: continue
            worst = 0
            stack = [(p, 0) for p in preds[i]]
            seen = set()
            while stack:
                j, dist = stack.pop()
                if (j, dist) in seen: continue
                seen.add((j, dist))
                P = ins[j]
                if P.is_label or P.is_dir or P.empty:
                    for p in preds[j]: stack.append((p, dist))
                    continue
                k = need(P, C)
                if k > dist: worst = max(worst, k - dist)
                nd = dist + P.states()
                if nd < MAXD:
                    for p in preds[j]: stack.append((p, nd))
            if worst > 0:
                fixes.append((i, worst)); last_fix = i
        if not fixes:
            return lines, total
        for i, w in reversed(fixes):
            lines.insert(i, "    s_nop %d" % (w - 1))
        total += len(fixes)

class Prog:
    def __init__(self):
        self.lines = []
    def __call__(self, text):
        for l in text.split("\n"):
            l = l.strip()
            if not l: continue
            self.lines.append(l if l.endswith(":") or l.startswith(".") else "    " + l)
    def label(self, name):
        self.lines.append(name + ":")
    def comment(self, text):
        self.lines.append("    ; " + text)

class VmQ:
    def __init__(self):
        self.q = []
    def issue(self, tag):
        self.q.append(tag)
    def count_for(self, tags):
        tags = set(tags) if not isinstance(tags, (str, tuple)) else {tags}
        last = -1
        for i, t in enumerate(self.q):
            if t in tags: last = i
        if last < 0: return None
        return min(63, len(self.q) - 1 - last)
    def retire(self, n):
        if n < len(self.q):
            self.q = self.q[len(self.q) - n:] if n > 0 else []
```

```python
S, D, F, H, DH = 2048, 640, 1728, 32, 20
KS_H, KS_O = F // 32, D // 32
KS_T = KS_H + KS_O
AF_BYTES = (S // 16) * KS_T * 1024
G_OFF = AF_BYTES
G_BYTES = S * 4
STAMP_OFF = G_OFF + G_BYTES

KA_AX, KA_WQKV, KA_WO, KA_BX, KA_W1, KA_B1, KA_W2, KA_B2, KA_GW, KA_OUT, KA_DBG, KA_WS = [8 * i for i in range(12)]

def srd(p, s, base_lo, nbytes):
    p(f"s_mov_b32 s{s}, s{base_lo}")
    p(f"s_and_b32 s{s+1}, s{base_lo+1}, 0xffff")
    p(f"s_mov_b32 s{s+2}, {nbytes}")
    p(f"s_mov_b32 s{s+3}, 0x20000")

def div_const(p, dst, src, d, maxval, tmp=None):
    for sh in range(16, 24):
        m = -(-(1 << sh) // d)
        if all((x * m) >> sh == x // d for x in range(maxval + 1)) and m * maxval < (1 << 32) and m < (1 << 24):
            p(f"v_mul_u32_u24 v{dst}, {m}, v{src}")
            p(f"v_lshrrev_b32 v{dst}, {sh}, v{dst}")
            return
    raise ValueError("no magic")

KD = """.section .rodata,"a"
.p2align 6
.amdhsa_kernel {name}
  .amdhsa_next_free_vgpr {vgpr}
  .amdhsa_next_free_sgpr {sgpr}
  .amdhsa_accum_offset {acc}
  .amdhsa_group_segment_fixed_size 0
  .amdhsa_kernarg_size 96
  .amdhsa_user_sgpr_count 2
  .amdhsa_user_sgpr_kernarg_segment_ptr 1
  .amdhsa_system_sgpr_workgroup_id_x 1
.end_amdhsa_kernel
.text
"""

def kernel_head(p, name):
    p(f".globl {name}")
    p(".p2align 8")
    p(f".type {name},@function")
    p.label(name)
```

```python
from asmlib import *
from common import *

R = 6
SLOT = 24576
XOFF = 15360
NK = 20

S_X, S_WT, S_FX, S_AFS, S_AUX, S_AUX2, S_GS = 16, 20, 24, 28, 32, 36, 40
S_W, S_J, S_I = 50, 51, 52
S_RD, S_DM, S_KW, S_KX, S_KF, S_FD, S_FSTEP, S_CNT = 53, 54, 55, 56, 57, 58, 59, 60
S_T0, S_T1, S_T2 = 61, 62, 63
S_XSZ, S_WSZ, S_FSZ = 64, 65, 66
S_MASK = 68
V_LANE = 1
V_DMA = 4
V_XB, V_WB0, V_WB1 = 10, 11, 12
V_XA, V_WA0, V_WA1 = 13, 14, 15
ACC = 16
V_T = 240
A_X = 0
A_WF = 40

def interleave(p, mfmas, fill, vtag=None):
    n = len(mfmas)
    gaps = [[] for _ in range(n)]
    gi = 0
    for e in fill:
        if e[0] == "s": gaps[min(gi, n - 1)].append(e)
        elif e[0] == "sp": gaps[max(0, min(gi, n - 1) - 1)].append(e)
        elif e[0] == "skip": gi += 1
        else:
            gaps[min(gi, n - 1)].append(e); gi += 1
    for m, g in zip(mfmas, gaps):
        p(m)
        for e in g: p(e[1])

def ring_advance(p):
    out = []
    out.append(("s", f"s_add_u32 s{S_RD}, s{S_RD}, {SLOT}"))
    out.append(("s", f"s_cmp_eq_u32 s{S_RD}, {R * SLOT}"))
    out.append(("s", f"s_cselect_b32 s{S_RD}, 0, s{S_RD}"))
    return out

def lane_common(p, wpitch):
    L = V_LANE; t0, t1, t2, t3 = V_T, V_T + 1, V_T + 2, V_T + 3
    p(f"v_and_b32 v{t0}, 15, v{L}")
    p(f"v_lshrrev_b32 v{t1}, 4, v{L}")
    p(f"v_lshrrev_b32 v{t2}, 2, v{t0}")
    p(f"v_sub_u32 v{t3}, 0, v{t2}")
    p(f"v_and_b32 v{t3}, 3, v{t3}")
    p(f"v_xor_b32 v{t3}, v{t3}, v{t1}")
    p(f"v_lshlrev_b32 v{t3}, 4, v{t3}")
    p(f"v_lshl_add_u32 v{V_XB}, v{t0}, 6, v{t3}")
    p(f"v_add_u32 v{V_XB}, {XOFF}, v{V_XB}")
    p(f"v_lshrrev_b32 v{t3}, 1, v{t1}")
    p(f"v_lshlrev_b32 v{t3}, 4, v{t3}")
    p(f"v_and_b32 v{t1}, 1, v{t1}")
    p(f"v_lshl_add_u32 v{t3}, v{t1}, 2, v{t3}")
    p(f"v_add_u32 v{t3}, v{t3}, v{t2}")
    p(f"v_mul_u32_u24 v{t3}, {wpitch}, v{t3}")
    p(f"v_and_b32 v{t0}, 3, v{L}")
    p(f"v_lshl_add_u32 v{V_WB0}, v{t0}, 3, v{t3}")

def x_dma_offset(p, dst, t_expr_rows, row0_sgpr):
    L = V_LANE; t0, t1 = V_T + 4, V_T + 5
    p(f"v_lshrrev_b32 v{t0}, 4, v{L}")
    p(f"v_sub_u32 v{t0}, 0, v{t0}")
    p(f"v_xor_b32 v{t0}, v{t0}, v{L}")
    p(f"v_and_b32 v{t0}, 3, v{t0}")
    p(f"v_lshrrev_b32 v{t1}, 2, v{L}")
    p(f"v_mul_u32_u24 v{t1}, 1280, v{t1}")
    p(f"v_lshl_add_u32 v{t1}, v{t0}, 4, v{t1}")
    p(f"v_add_u32 v{dst}, s{row0_sgpr}, v{t1}")

def swap23(p, dst, src, tmp):
    p(f"v_and_b32 v{dst}, 0x33, v{src}")
    p(f"v_and_b32 v{tmp}, 4, v{src}")
    p(f"v_lshl_add_u32 v{dst}, v{tmp}, 1, v{dst}")
    p(f"v_and_b32 v{tmp}, 8, v{src}")
    p(f"v_lshrrev_b32 v{tmp}, 1, v{tmp}")
    p(f"v_add_u32 v{dst}, v{dst}, v{tmp}")

def step_head(p, nd):
    p(f"s_waitcnt vmcnt({(R - 2) * nd}) lgkmcnt(0)")
    p("s_barrier")

def addr_update(two):
    f = [("s", f"v_add_u32 v{V_XA}, s{S_RD}, v{V_XB}"), ("s", f"v_add_u32 v{V_WA0}, s{S_RD}, v{V_WB0}")]
    if two: f.append(("s", f"v_add_u32 v{V_WA1}, s{S_RD}, v{V_WB1}"))
    return f

HP = 448

def h_dma_list(ch, with_tags=False):
    nW = 4 if ch == 0 else 3
    seq = []
    for q in range(nW):
        seq.append(("sp", f"s_add_u32 m0, s{S_DM}, {q * 4096}"))
        seq.append(("v", f"buffer_load_dwordx4 v{V_DMA+q}, s[{S_WT}:{S_WT+3}], s{S_KW} offen lds"))
    for q in range(2):
        seq.append(("sp", f"s_add_u32 m0, s{S_DM}, {XOFF + q * 4096}"))
        seq.append(("v", f"buffer_load_dwordx4 v{V_DMA+4+q}, s[{S_X}:{S_X+3}], s{S_KX} offen lds"))
    return seq

def dm_advance(kwstep, flex=False):
    out = [("s", f"s_add_u32 s{S_DM}, s{S_DM}, {SLOT}"),
           ("s", f"s_cmp_ge_u32 s{S_DM}, {R * SLOT}"),
           ("s", f"s_cselect_b32 s{S_T0}, {R * SLOT}, 0"),
           ("s", f"s_sub_u32 s{S_DM}, s{S_DM}, s{S_T0}"),
           ("s", f"s_add_u32 s{S_KW}, s{S_KW}, {kwstep}"),
           ("s", f"s_add_u32 s{S_KX}, s{S_KX}, 64")]
    if flex: out.append(("s", f"s_add_u32 s{S_KF}, s{S_KF}, s{S_FSTEP}"))
    return out

def h_reads(ch, rh_unused, par):
    out = []
    for b in range(4):
        r = A_X + 20 * par + 4 * b
        out.append(("d", f"ds_read_b128 a[{r}:{r+3}], v{V_XA} offset:{b * 1024}"))
    for c in range(7):
        cb = 7 * ch + c
        r = A_WF + 32 * par + 4 * c
        va = V_WA0 if cb % 2 == 0 else V_WA1
        out.append(("d", f"ds_read_b64_tr_b16 a[{r}:{r+1}], v{va} offset:{cb * 32}"))
        out.append(("d", f"ds_read_b64_tr_b16 a[{r+2}:{r+3}], v{va} offset:{8 * HP + cb * 32}"))
    return out

def h_mfmas(par):
    out = []
    for c in range(7):
        for b in range(4):
            a = ACC + 4 * (b * 7 + c); w = A_WF + 32 * par + 4 * c; x = A_X + 20 * par + 4 * b
            out.append(f"v_mfma_f32_16x16x32_bf16 v[{a}:{a+3}], a[{w}:{w+3}], a[{x}:{x+3}], v[{a}:{a+3}]")
    return out

def tail_size_update(flex):
    out = [("s", f"s_cmp_lt_u32 s{S_CNT}, {NK - R}"),
           ("s", f"s_cselect_b32 s{S_WT+2}, s{S_WSZ}, 0"),
           ("s", f"s_cselect_b32 s{S_X+2}, s{S_XSZ}, 0")]
    if flex: out.append(("s", f"s_cselect_b32 s{S_FX+2}, s{S_FSZ}, 0"))
    out.append(("s", f"s_add_u32 s{S_CNT}, s{S_CNT}, 1"))
    return out

def gen_h_loop(p, ch, tag):
    nd = 6 if ch == 0 else 5
    p.label(f"L_h_loop{ch}{tag}")
    for par in (0, 1):
        step_head(p, nd)
        fill = ring_advance(p) + addr_update(True) + [("skip",)]
        fill += h_reads(ch, None, par ^ 1)
        fill += tail_size_update(False)
        fill += h_dma_list(ch)
        fill += dm_advance(32 * F * 2)
        interleave(p, h_mfmas(par), fill)
    p(f"s_cmp_lt_u32 s{S_CNT}, {NK}")
    p(f"s_cbranch_scc1 L_h_loop{ch}{tag}")

def gen_h(p, tag, after):
    L = V_LANE; T = V_T
    p.label(f"L_role_h{tag}")
    p(f"s_load_dwordx2 s[4:5], s[0:1], {KA_AX}")
    p(f"s_load_dwordx4 s[8:11], s[0:1], {KA_W1}")
    p(f"s_load_dwordx2 s[6:7], s[0:1], {KA_AX}")
    p(f"s_load_dwordx2 s[12:13], s[0:1], {KA_GW}")
    p(f"s_load_dwordx2 s[14:15], s[0:1], {KA_WS}")
    p(f"s_mul_i32 s{S_T1}, s{S_I}, 224")
    p(f"s_min_u32 s{S_T1}, s{S_T1}, 1504")
    p(f"s_lshl_b32 s{S_T2}, s{S_T1}, 1")
    lane_common(p, HP)
    p(f"v_lshlrev_b32 v{T+1}, 5, v{T+1}")
    p(f"v_sub_u32 v{V_WB1}, v{V_WB0}, v{T+1}")
    p(f"v_add_u32 v{V_WB0}, v{V_WB0}, v{T+1}")
    p(f"s_and_b32 s{S_T0}, s{S_W}, 1")
    p(f"s_lshl_b32 s{S_T0}, s{S_T0}, 12")
    p(f"v_add_u32 v{V_XB}, s{S_T0}, v{V_XB}")
    for q in range(4):
        p(f"s_lshl_b32 s{S_T0}, s{S_W}, 6")
        p(f"s_add_u32 s{S_T0}, s{S_T0}, {256 * q}")
        p(f"v_add_u32 v{T}, s{S_T0}, v{L}")
        div_const(p, T + 1, T, 28, 1023)
        p(f"v_mul_u32_u24 v{T+2}, 28, v{T+1}")
        p(f"v_sub_u32 v{T+2}, v{T}, v{T+2}")
        p(f"v_lshrrev_b32 v{T+3}, 2, v{T+1}")
        p(f"v_and_b32 v{T+3}, 1, v{T+3}")
        p(f"v_lshlrev_b32 v{T+3}, 1, v{T+3}")
        p(f"v_xor_b32 v{T+2}, v{T+2}, v{T+3}")
        swap23(p, T + 3, T + 1, T + 4)
        p(f"v_mul_u32_u24 v{T+3}, {F * 2}, v{T+3}")
        p(f"v_lshl_add_u32 v{T+3}, v{T+2}, 4, v{T+3}")
        p(f"v_add_u32 v{V_DMA+q}, s{S_T2}, v{T+3}")
    p(f"s_lshl_b32 s{S_T0}, s{S_J}, 7")
    p(f"s_lshl_b32 s{S_T1}, s{S_W}, 4")
    p(f"s_add_u32 s{S_T0}, s{S_T0}, s{S_T1}")
    p(f"s_mul_i32 s{S_T0}, s{S_T0}, 1280")
    x_dma_offset(p, V_DMA + 4, 0, S_T0)
    p(f"v_add_u32 v{V_DMA+5}, {64 * 1280}, v{V_DMA+4}")
    p("s_waitcnt lgkmcnt(0)")
    srd(p, S_X, 4, S * D * 2)
    srd(p, S_WT, 8, D * F * 2)
    srd(p, S_AUX, 10, F * 2)
    srd(p, S_AUX2, 6, S * D * 2)
    srd(p, S_GS, 12, D * 2)
    p(f"s_mov_b32 s{S_XSZ}, {S * D * 2}")
    p(f"s_mov_b32 s{S_WSZ}, {D * F * 2}")
    p(f"s_lshl_b32 s{S_DM}, s{S_W}, 10")
    p(f"s_mov_b32 s{S_KW}, 0"); p(f"s_mov_b32 s{S_KX}, 0"); p(f"s_mov_b32 s{S_RD}, 0"); p(f"s_mov_b32 s{S_CNT}, 0")
    GX, GW_, B1 = 160, 180, 200
    p(f"s_lshl_b32 s{S_T0}, s{S_J}, 7")
    p(f"s_lshl_b32 s{S_T1}, s{S_I}, 4")
    p(f"s_add_u32 s{S_T0}, s{S_T0}, s{S_T1}")
    p(f"s_lshl_b32 s{S_T1}, s{S_W}, 2")
    p(f"s_add_u32 s{S_T0}, s{S_T0}, s{S_T1}")
    p(f"v_lshrrev_b32 v{T}, 4, v{L}")
    p(f"v_add_u32 v{T+6}, s{S_T0}, v{T}")
    p(f"v_mul_u32_u24 v{T}, 1280, v{T+6}")
    p(f"v_and_b32 v{T+1}, 15, v{L}")
    p(f"v_lshlrev_b32 v{T+1}, 4, v{T+1}")
    p(f"v_add_u32 v{T}, v{T}, v{T+1}")
    for t in range(5):
        p(f"buffer_load_dwordx4 v[{GX+4*t}:{GX+4*t+3}], v{T}, s[{S_AUX2}:{S_AUX2+3}], 0 offen offset:{256 * t}")
        p(f"buffer_load_dwordx4 v[{GW_+4*t}:{GW_+4*t+3}], v{T+1}, s[{S_GS}:{S_GS+3}], 0 offen offset:{256 * t}")
    p(f"s_lshr_b32 s{S_T0}, s{S_W}, 1")
    p(f"s_mul_i32 s{S_T0}, s{S_T0}, 224")
    p(f"s_add_u32 s{S_T0}, s{S_T0}, s{S_T2}")
    p(f"v_lshrrev_b32 v{T}, 4, v{L}")
    p(f"v_lshl_add_u32 v{T}, v{T}, 3, s{S_T0}")
    for c in range(7):
        p(f"buffer_load_dwordx2 v[{B1+2*c}:{B1+2*c+1}], v{T}, s[{S_AUX}:{S_AUX+3}], 0 offen offset:{32 * c}")
    p(f"s_cmp_ge_u32 s{S_W}, 2")
    p(f"s_cbranch_scc1 L_h_pre1{tag}")
    for ch in (0, 1):
        if ch == 1: p.label(f"L_h_pre1{tag}")
        nd = 6 if ch == 0 else 5
        for st in range(R):
            for e in h_dma_list(ch): p(e[1])
            for e in dm_advance(32 * F * 2): p(e[1])
        for r in range(ACC, ACC + 112, 2): p(f"v_mov_b64 v[{r}:{r+1}], 0")
        p(f"s_waitcnt vmcnt({(R - 1) * nd})")
        p("s_barrier")
        for e in addr_update(True): p(e[1])
        for e in h_reads(ch, None, 0): p(e[1])
        gen_h_loop(p, ch, tag)
        h_epilogue(p, ch, tag, GX, GW_, B1)
        p(f"s_branch {after}")

def h_epilogue(p, ch, tag, GX, GW_, B1):
    L = V_LANE; T = V_T
    p("s_waitcnt vmcnt(0)")
    p(f"v_mov_b32 v{T}, 0")
    p(f"v_mov_b32 v{T+1}, 0")
    for t in range(10):
        p(f"v_dot2_f32_bf16 v{T}, v{GX+t}, v{GW_+t}, v{T}")
        p(f"v_dot2_f32_bf16 v{T+1}, v{GX+10+t}, v{GW_+10+t}, v{T+1}")
    p(f"v_add_f32 v{T}, v{T}, v{T+1}")
    for rot in (8, 4, 2, 1):
        p(f"v_add_f32_dpp v{T}, v{T}, v{T} row_ror:{rot} row_mask:0xf bank_mask:0xf")
    p(f"v_mul_f32 v{T}, 0xbfb8aa3b, v{T}")
    p(f"v_exp_f32 v{T}, v{T}")
    p(f"v_add_f32 v{T}, 1.0, v{T}")
    p(f"v_rcp_f32 v{T}, v{T}")
    p(f"v_lshlrev_b32 v{T+2}, 2, v{T+6}")
    p(f"v_and_b32 v{T+3}, 15, v{L}")
    p(f"v_cmp_eq_u32 vcc, 0, v{T+3}")
    p(f"v_cndmask_b32 v{T+2}, -1, v{T+2}, vcc")
    p(f"s_add_u32 s14, s14, {G_OFF}")
    p("s_addc_u32 s15, s15, 0")
    srd(p, S_GS, 14, G_BYTES)
    p(f"buffer_store_dword v{T}, v{T+2}, s[{S_GS}:{S_GS+3}], 0 offen")
    p(f"s_sub_u32 s14, s14, {G_OFF}")
    p("s_subb_u32 s15, s15, 0")
    srd(p, S_AFS, 14, AF_BYTES)
    BF = 160
    for c in range(7):
        lo, hi = B1 + 2 * c, B1 + 2 * c + 1; r = BF + 4 * c
        p(f"v_lshlrev_b32 v{r}, 16, v{lo}"); p(f"v_and_b32 v{r+1}, 0xffff0000, v{lo}")
        p(f"v_lshlrev_b32 v{r+2}, 16, v{hi}"); p(f"v_and_b32 v{r+3}, 0xffff0000, v{hi}")
    p(f"s_lshl_b32 s{S_T0}, s{S_J}, 3")
    p(f"s_and_b32 s{S_T1}, s{S_W}, 1")
    p(f"s_lshl_b32 s{S_T1}, s{S_T1}, 2")
    p(f"s_add_u32 s{S_T0}, s{S_T0}, s{S_T1}")
    p(f"s_mul_i32 s{S_T0}, s{S_T0}, {KS_T * 1024}")
    p(f"s_lshl_b32 s{S_T1}, s{S_T2}, 4")
    p(f"s_add_u32 s{S_T0}, s{S_T0}, s{S_T1}")
    p(f"v_lshlrev_b32 v{T}, 4, v{L}")
    p(f"v_add_u32 v{T}, s{S_T0}, v{T}")
    PK = 200
    for b in range(4):
        if b: p(f"v_add_u32 v{T}, {KS_T * 1024}, v{T}")
        p(f"v_add_u32 v{T+1}, 4096, v{T}")
        for c in range(7):
            a = ACC + 4 * (b * 7 + c); bf = BF + 4 * c
            for h in (0, 2):
                p(f"v_pk_add_f32 v[{a+h}:{a+h+1}], v[{a+h}:{a+h+1}], v[{bf+h}:{bf+h+1}]")
            for r in range(4):
                p(f"v_max_f32 v{a+r}, 0, v{a+r}")
            for h in (0, 2):
                p(f"v_pk_mul_f32 v[{a+h}:{a+h+1}], v[{a+h}:{a+h+1}], v[{a+h}:{a+h+1}]")
            cbl = 7 * ch + c
            half = cbl & 1; ks = cbl >> 1
            d = PK + 4 * ((b * 4 + (ks - (3 if ch else 0))) % 8) + 2 * half
            p(f"v_cvt_pk_bf16_f32 v{d}, v{a}, v{a+1}")
            p(f"v_cvt_pk_bf16_f32 v{d+1}, v{a+2}, v{a+3}")
            va = T + (ks >> 2); off = (ks & 3) * 1024
            single = (ch == 0 and c == 6) or (ch == 1 and c == 0)
            if single:
                p(f"buffer_store_dwordx2 v[{d}:{d+1}], v{va}, s[{S_AFS}:{S_AFS+3}], 0 offen offset:{off + 8 * half}")
            elif half == 1:
                p(f"buffer_store_dwordx4 v[{d-2}:{d+1}], v{va}, s[{S_AFS}:{S_AFS+3}], 0 offen offset:{off}")

QP = 480
def q_cols(ch): return list(range(0, 8)) if ch == 0 else list(range(8, 15))
def q_halo(rh, ch):
    return {(0, 0): [5, 6], (1, 0): [7], (0, 1): [8, 9, 10, 11], (1, 1): [12, 13, 14]}[(rh, ch)]
def q_acc(ch, b, cb):
    cols = q_cols(ch)
    return ACC + 4 * (b * 8 + cols.index(cb))
def q_acc_halo(k): return ACC + 128 + 4 * k

def q_dma_list():
    seq = []
    for q in range(3):
        seq.append(("sp", f"s_add_u32 m0, s{S_DM}, {q * 4096}"))
        seq.append(("v", f"buffer_load_dwordx4 v{V_DMA+q}, s[{S_WT}:{S_WT+3}], s{S_KW} offen lds"))
    seq.append(("sp", f"s_add_u32 m0, s{S_DM}, s{S_FD}"))
    seq.append(("v", f"buffer_load_dwordx4 v{V_DMA+3}, s[{S_FX}:{S_FX+3}], s{S_KF} offen lds"))
    for q in range(2):
        seq.append(("sp", f"s_add_u32 m0, s{S_DM}, {XOFF + q * 4096}"))
        seq.append(("v", f"buffer_load_dwordx4 v{V_DMA+4+q}, s[{S_X}:{S_X+3}], s{S_KX} offen lds"))
    return seq

def q_reads(rh, ch, par):
    out = []
    for b in range(4):
        r = A_X + 20 * par + 4 * b
        out.append(("d", f"ds_read_b128 a[{r}:{r+3}], v{V_XA} offset:{(1 + 4 * rh + b) * 1024}"))
    r = A_X + 20 * par + 16
    out.append(("d", f"ds_read_b128 a[{r}:{r+3}], v{V_XA}"))
    for k, cb in enumerate(q_cols(ch)):
        r = A_WF + 32 * par + 4 * k
        out.append(("d", f"ds_read_b64_tr_b16 a[{r}:{r+1}], v{V_WA0} offset:{cb * 32}"))
        out.append(("d", f"ds_read_b64_tr_b16 a[{r+2}:{r+3}], v{V_WA0} offset:{8 * QP + cb * 32}"))
    return out

def q_mfmas(rh, ch, par):
    out = []
    cols = q_cols(ch); halo = q_halo(rh, ch)
    def one(a, cb, x):
        w = A_WF + 32 * par + 4 * cols.index(cb)
        if cb < 10: return f"v_mfma_f32_16x16x32_bf16 v[{a}:{a+3}], a[{w}:{w+3}], a[{x}:{x+3}], v[{a}:{a+3}]"
        return f"v_mfma_f32_16x16x32_bf16 v[{a}:{a+3}], a[{x}:{x+3}], a[{w}:{w+3}], v[{a}:{a+3}]"
    for cb in cols:
        for b in range(4):
            out.append(one(q_acc(ch, b, cb), cb, A_X + 20 * par + 4 * b))
        if cb in halo:
            out.append(one(q_acc_halo(halo.index(cb)), cb, A_X + 20 * par + 16))
    return out

def gen_q_loop(p, rh, ch, tag):
    p.label(f"L_q_loop{rh}{ch}{tag}")
    for par in (0, 1):
        step_head(p, 6)
        fill = ring_advance(p) + addr_update(False) + [("skip",)]
        fill += q_reads(rh, ch, par ^ 1)
        fill += tail_size_update(True)
        fill += q_dma_list()
        fill += dm_advance(32 * 3 * D * 2, flex=True)
        interleave(p, q_mfmas(rh, ch, par), fill)
    p(f"s_cmp_lt_u32 s{S_CNT}, {NK}")
    p(f"s_cbranch_scc1 L_q_loop{rh}{ch}{tag}")

def ex_off(m, B, c): return ((m * 9 + B) * 5 + c) * 512
QR, KR, VR = 160, 180, 210
def qreg(bb, c): return QR + 10 * bb + 2 * c
def kreg(B, c): return KR + 10 * B + 2 * c
def vreg(c, B): return VR + 6 * c + 2 * B
V_EX = 10
V_EX0 = 11

def pack(p, d, a):
    p(f"v_cvt_pk_bf16_f32 v{d}, v{a}, v{a+1}")
    p(f"v_cvt_pk_bf16_f32 v{d+1}, v{a+2}, v{a+3}")

def q_export_halo(p, rh, ch):
    T = V_T
    for k, cb in enumerate(q_halo(rh, ch)):
        m, c = (1, cb - 5) if cb < 10 else (2, cb - 10)
        d = T + 2 * k
        pack(p, d, q_acc_halo(k))
        p(f"ds_write_b64 v{V_EX0}, v[{d}:{d+1}] offset:{ex_off(m, 0, c)}")

def q_exchange(p, ch):
    T = V_T; tmp = [T + 8, T + 10, T + 12, T + 14]; ti = 0
    def exp(m, b, c, src):
        p(f"ds_write_b64 v{V_EX}, v[{src}:{src+1}] offset:{ex_off(m, 1 + b, c)}")
    if ch == 0:
        for b in (2, 3):
            for c in range(5):
                d = tmp[ti % 4]; ti += 1
                pack(p, d, q_acc(0, b, c)); exp(0, b, c, d)
        for b in (1, 2, 3):
            for c in range(3):
                d = kreg(b + 1, c) if b == 1 else tmp[ti % 4]; ti += 1
                pack(p, d, q_acc(0, b, 5 + c)); exp(1, b, c, d)
        for c in range(3): pack(p, kreg(1, c), q_acc(0, 0, 5 + c))
        for b in (0, 1):
            for c in range(5): pack(p, qreg(b, c), q_acc(0, b, c))
        p("s_waitcnt lgkmcnt(0)"); p("s_barrier")
        for c in range(3): p(f"ds_read_b64 v[{kreg(0,c)}:{kreg(0,c)+1}], v{V_EX} offset:{ex_off(1, 0, c)}")
        for B in range(3):
            for c in (3, 4): p(f"ds_read_b64 v[{kreg(B,c)}:{kreg(B,c)+1}], v{V_EX} offset:{ex_off(1, B, c)}")
        for c in range(5):
            for B in range(3): p(f"ds_read_b64 v[{vreg(c,B)}:{vreg(c,B)+1}], v{V_EX} offset:{ex_off(2, B, c)}")
    else:
        for b in (0, 1, 3):
            for c in (3, 4):
                d = kreg(b - 1, c) if b >= 1 else tmp[ti % 4]; ti += 1
                pack(p, d, q_acc(1, b, 5 + c)); exp(1, b, c, d)
            for c in range(5):
                d = vreg(c, b - 1) if b >= 1 else tmp[ti % 4]; ti += 1
                pack(p, d, q_acc(1, b, 10 + c)); exp(2, b, c, d)
        for c in (3, 4): pack(p, kreg(1, c), q_acc(1, 2, 5 + c))
        for c in range(5): pack(p, vreg(c, 1), q_acc(1, 2, 10 + c))
        p("s_waitcnt lgkmcnt(0)"); p("s_barrier")
        for bb in range(2):
            for c in range(5): p(f"ds_read_b64 v[{qreg(bb,c)}:{qreg(bb,c)+1}], v{V_EX} offset:{ex_off(0, 3 + bb, c)}")
        for B in range(3):
            for c in range(3): p(f"ds_read_b64 v[{kreg(B,c)}:{kreg(B,c)+1}], v{V_EX} offset:{ex_off(1, 2 + B, c)}")

M_ODD, M_G0, M_GE1, M_LE1, M_GE2, M_LE2, M_G3, M_CUR0, M_CUR1, M_NEG0, M_NEG1 = [S_MASK + 2 * k for k in range(11)]
V_SEL = 4
S_SO = 90
def sp(x): return f"s[{x}:{x+1}]"

def att_setup(p):
    L = V_LANE; T = V_T
    def m64(dst, hi, lo):
        p(f"s_mov_b32 s{dst}, {lo:#x}"); p(f"s_mov_b32 s{dst+1}, {hi:#x}")
    m64(M_ODD, 0xAAAAAAAA, 0xAAAAAAAA); m64(M_G0, 0, 0xFFFF); m64(M_GE1, 0xFFFFFFFF, 0xFFFF0000)
    m64(M_LE1, 0, 0xFFFFFFFF); m64(M_GE2, 0xFFFFFFFF, 0); m64(M_LE2, 0xFFFF, 0xFFFFFFFF); m64(M_G3, 0xFFFF0000, 0)
    p(f"v_and_b32 v{T}, 15, v{L}")
    p(f"v_and_b32 v{T+1}, 1, v{L}")
    p(f"v_lshrrev_b32 v{T+2}, 4, v{L}")
    p(f"v_lshl_add_u32 v{T+2}, v{T+2}, 2, v{T+1}")
    p(f"v_cmp_le_u32 {sp(M_CUR0)}, v{T+2}, v{T}")
    p(f"v_add_u32 v{T+2}, 2, v{T+2}")
    p(f"v_cmp_le_u32 {sp(M_CUR1)}, v{T+2}, v{T}")
    p(f"s_or_b32 s{S_T0}, s{S_J}, s{S_W}")
    p(f"s_cmp_eq_u32 s{S_T0}, 0")
    p(f"s_cselect_b64 {sp(M_NEG0)}, -1, 0")
    p(f"s_cselect_b64 {sp(M_NEG1)}, -1, 0")
    p(f"s_andn2_b64 {sp(M_NEG0)}, {sp(M_NEG0)}, {sp(M_CUR0)}")
    p(f"s_andn2_b64 {sp(M_NEG1)}, {sp(M_NEG1)}, {sp(M_CUR1)}")
    p(f"v_mov_b32 v{T+3}, 0x0c0c0100"); p(f"v_mov_b32 v{T+4}, 0x01000c0c")
    p(f"v_cndmask_b32 v{T+3}, v{T+3}, v{T+4}, {sp(M_ODD)}")
    p(f"v_mov_b32 v{T+5}, 0x0c0c0302"); p(f"v_mov_b32 v{T+4}, 0x03020c0c")
    p(f"v_cndmask_b32 v{T+5}, v{T+5}, v{T+4}, {sp(M_ODD)}")
    p(f"v_mov_b32 v{T+4}, 0x0c0c0c0c")
    p(f"v_cndmask_b32 v{V_SEL+0}, v{T+3}, v{T+4}, {sp(M_CUR0)}")
    p(f"v_cndmask_b32 v{V_SEL+2}, v{T+4}, v{T+3}, {sp(M_CUR0)}")
    p(f"v_cndmask_b32 v{V_SEL+1}, v{T+5}, v{T+4}, {sp(M_CUR1)}")
    p(f"v_cndmask_b32 v{V_SEL+3}, v{T+4}, v{T+5}, {sp(M_CUR1)}")
    for c in range(5):
        p(f"s_mul_i32 s{S_T0}, s{S_I}, 5")
        p(f"s_add_u32 s{S_T0}, s{S_T0}, {c}")
        p(f"s_lshr_b32 s{S_T1}, s{S_T0}, 1")
        p(f"s_add_u32 s{S_T1}, s{S_T1}, {KS_H}")
        p(f"s_lshl_b32 s{S_T1}, s{S_T1}, 10")
        p(f"s_and_b32 s{S_T0}, s{S_T0}, 1")
        p(f"s_lshl_b32 s{S_T0}, s{S_T0}, 3")
        p(f"s_add_u32 s{S_SO+c}, s{S_T1}, s{S_T0}")

def cross4(p, regs, op, t):
    a, b, c, d = regs
    p(f"v_permlane32_swap_b32 v{a}, v{b}")
    p(f"v_permlane32_swap_b32 v{c}, v{d}")
    p(f"{op} v{a}, v{a}, v{b}")
    p(f"{op} v{c}, v{c}, v{d}")
    p(f"v_permlane16_swap_b32 v{a}, v{c}")
    p(f"{op} v{a}, v{a}, v{c}")
    p(f"v_mov_b32 v{c}, v{a}")
    p(f"v_permlane16_swap_b32 v{a}, v{c}")
    p(f"v_mov_b32 v{b}, v{a}")
    p(f"v_mov_b32 v{d}, v{c}")
    p(f"v_permlane32_swap_b32 v{a}, v{b}")
    p(f"v_permlane32_swap_b32 v{c}, v{d}")

import struct, math
CEXP = struct.unpack("<I", struct.pack("<f", (DH ** -0.5) * math.log2(math.e)))[0]

def attention(p):
    L = V_LANE; T = V_T
    QM, SR, PR, OR, WK = 16, 32, 64, 80, 112
    qmask = {0: [None, M_G0], 1: [M_GE1, M_LE1], 2: [M_GE2, M_LE2], 3: [M_G3, None]}
    p(f"s_lshl_b32 s{S_T0}, s{S_J}, 3")
    p(f"s_lshl_b32 s{S_T1}, s{S_W}, 1")
    p(f"s_add_u32 s{S_T0}, s{S_T0}, s{S_T1}")
    p(f"s_mul_i32 s{S_T0}, s{S_T0}, {KS_T * 1024}")
    p(f"v_lshlrev_b32 v{T+14}, 4, v{L}")
    p(f"v_add_u32 v{T+14}, s{S_T0}, v{T+14}")
    p(f"v_add_u32 v{T+15}, {KS_T * 1024}, v{T+14}")
    p(f"s_mov_b32 s{S_T2}, {CEXP:#x}")
    p("s_waitcnt lgkmcnt(0)")
    for bb in range(2):
        for h in range(4):
            for half in range(2):
                mk = qmask[h][half]
                for r in range(2):
                    src = qreg(bb, h + half) + r; dst = QM + 4 * h + 2 * half + r
                    if mk is None: p(f"v_mov_b32 v{dst}, v{src}")
                    else: p(f"v_cndmask_b32 v{dst}, 0, v{src}, {sp(mk)}")
        for h in range(4):
            for pc in range(2):
                s = SR + 8 * h + 4 * pc; k = kreg(bb + pc, h)
                p(f"v_mfma_f32_16x16x32_bf16 v[{s}:{s+3}], v[{k}:{k+3}], v[{QM+4*h}:{QM+4*h+3}], 0")
        B0 = [WK + 2 * h for h in range(4)]
        MX = [WK + 8 + h for h in range(4)]
        for h in range(4):
            s = SR + 8 * h; b0 = B0[h]
            p(f"v_cndmask_b32 v{s}, v{s}, v{s+1}, {sp(M_ODD)}")
            p(f"v_cndmask_b32 v{s+2}, v{s+2}, v{s+3}, {sp(M_ODD)}")
            p(f"v_cndmask_b32 v{s+4}, v{s+4}, v{s+5}, {sp(M_ODD)}")
            p(f"v_cndmask_b32 v{s+6}, v{s+6}, v{s+7}, {sp(M_ODD)}")
            p(f"v_cndmask_b32 v{b0}, v{s}, v{s+4}, {sp(M_CUR0)}")
            p(f"v_cndmask_b32 v{b0+1}, v{s+2}, v{s+6}, {sp(M_CUR1)}")
            if bb == 0:
                p(f"v_cndmask_b32 v{b0}, v{b0}, v{T+13}, {sp(M_NEG0)}")
                p(f"v_cndmask_b32 v{b0+1}, v{b0+1}, v{T+13}, {sp(M_NEG1)}")
            p(f"v_max_f32 v{MX[h]}, v{b0}, v{b0+1}")
        cross4(p, MX, "v_max_f32", T)
        SM = [WK + 12 + h for h in range(4)]
        for h in range(4):
            b0 = B0[h]
            p(f"v_mul_f32 v{MX[h]}, s{S_T2}, v{MX[h]}")
            p(f"v_fma_f32 v{b0}, v{b0}, s{S_T2}, -v{MX[h]}")
            p(f"v_fma_f32 v{b0+1}, v{b0+1}, s{S_T2}, -v{MX[h]}")
        for h in range(4):
            b0 = B0[h]
            p(f"v_exp_f32 v{b0}, v{b0}")
            p(f"v_exp_f32 v{b0+1}, v{b0+1}")
        for h in range(4):
            p(f"v_add_f32 v{SM[h]}, v{B0[h]}, v{B0[h]+1}")
        cross4(p, SM, "v_add_f32", T)
        for h in range(4): p(f"v_rcp_f32 v{SM[h]}, v{SM[h]}")
        for h in range(4):
            b0 = B0[h]
            p(f"v_mul_f32 v{b0}, v{b0}, v{SM[h]}")
            p(f"v_mul_f32 v{b0+1}, v{b0+1}, v{SM[h]}")
            p(f"v_cvt_pk_bf16_f32 v{MX[h]}, v{b0}, v{b0+1}")
        for h in range(4):
            for r in range(4):
                p(f"v_perm_b32 v{PR+4*h+r}, v{MX[h]}, v{MX[h]}, v{V_SEL+r}")
        pairs = [(0, 0), (1, 0), (1, 1), (2, 1), (2, 2), (3, 2), (3, 3), (4, 3)]
        for k, (c, h) in enumerate(pairs):
            o = OR + 4 * k; v = vreg(c, bb)
            p(f"v_mfma_f32_16x16x32_bf16 v[{o}:{o+3}], v[{v}:{v+3}], v[{PR+4*h}:{PR+4*h+3}], 0")
        sel = {1: M_GE1, 2: M_GE2, 3: M_G3}
        for c in range(5):
            ks = [k for k, (cc, h) in enumerate(pairs) if cc == c]
            d = WK + 16 + 2 * c + 10 * bb
            pack(p, d, OR + 4 * ks[0])
            if len(ks) == 2:
                e = WK + 12
                pack(p, e, OR + 4 * ks[1])
                p(f"v_cndmask_b32 v{d}, v{d}, v{e}, {sp(sel[c])}")
                p(f"v_cndmask_b32 v{d+1}, v{d+1}, v{e+1}, {sp(sel[c])}")
            p(f"buffer_store_dwordx2 v[{d}:{d+1}], v{T+14+bb}, s[{S_AFS}:{S_AFS+3}], s{S_SO+c} offen")

def gen_q(p, tag, after):
    L = V_LANE; T = V_T
    p.label(f"L_role_q{tag}")
    p(f"s_load_dwordx4 s[4:7], s[0:1], {KA_AX}")
    p(f"s_load_dwordx2 s[14:15], s[0:1], {KA_WS}")
    lane_common(p, QP)
    p(f"s_mul_i32 s{S_T2}, s{S_I}, 160")
    for q in range(4):
        p(f"s_lshl_b32 s{S_T0}, s{S_W}, 6")
        p(f"s_add_u32 s{S_T0}, s{S_T0}, {256 * q}")
        p(f"v_add_u32 v{T}, s{S_T0}, v{L}")
        div_const(p, T + 1, T, 30, 1023)
        p(f"v_mul_u32_u24 v{T+2}, 30, v{T+1}")
        p(f"v_sub_u32 v{T+2}, v{T}, v{T+2}")
        div_const(p, T + 3, T + 2, 10, 29)
        p(f"v_mul_u32_u24 v{T+4}, 10, v{T+3}")
        p(f"v_sub_u32 v{T+2}, v{T+2}, v{T+4}")
        p(f"v_mul_u32_u24 v{T+3}, 1280, v{T+3}")
        p(f"v_lshl_add_u32 v{T+2}, v{T+2}, 4, v{T+3}")
        swap23(p, T + 3, T + 1, T + 4)
        p(f"v_mul_u32_u24 v{T+3}, {3 * D * 2}, v{T+3}")
        p(f"v_add_u32 v{T+3}, v{T+3}, v{T+2}")
        p(f"v_add_u32 v{V_DMA+q}, s{S_T2}, v{T+3}")
    p(f"s_lshl_b32 s{S_T0}, s{S_J}, 7")
    p(f"s_lshl_b32 s{S_T1}, s{S_W}, 4")
    p(f"s_add_u32 s{S_T0}, s{S_T0}, s{S_T1}")
    p(f"s_sub_u32 s{S_T0}, s{S_T0}, 16")
    p(f"s_mul_i32 s{S_T0}, s{S_T0}, 1280")
    x_dma_offset(p, V_DMA + 4, 0, S_T0)
    p(f"v_add_u32 v{V_DMA+5}, {64 * 1280}, v{V_DMA+4}")
    p("s_waitcnt lgkmcnt(0)")
    srd(p, S_X, 4, S * D * 2)
    srd(p, S_WT, 6, D * 3 * D * 2)
    srd(p, S_AFS, 14, AF_BYTES)
    p(f"s_mov_b32 s{S_XSZ}, {S * D * 2}")
    p(f"s_mov_b32 s{S_WSZ}, {D * 3 * D * 2}")
    p(f"s_mov_b32 s{S_T0}, {12 * 1024}")
    p(f"s_mov_b32 s{S_T1}, {32 * 3 * D * 2}")
    p(f"s_cmp_eq_u32 s{S_W}, 3")
    p(f"s_cselect_b32 s{S_FX}, s{S_X}, s{S_WT}")
    p(f"s_cselect_b32 s{S_FX+1}, s{S_X+1}, s{S_WT+1}")
    p(f"s_cselect_b32 s{S_FX+2}, s{S_X+2}, s{S_WT+2}")
    p(f"s_mov_b32 s{S_FX+3}, 0x20000")
    p(f"s_cselect_b32 s{S_FSZ}, s{S_XSZ}, s{S_WSZ}")
    p(f"s_cselect_b32 s{S_FSTEP}, 64, s{S_T1}")
    p(f"s_cselect_b32 s{S_FD}, {XOFF + 8 * 1024 - 3 * 1024}, s{S_T0}")
    p(f"s_cselect_b64 vcc, -1, 0")
    p(f"v_add_u32 v{T}, {80 * 1280}, v{V_DMA+4}")
    p(f"v_cndmask_b32 v{V_DMA+3}, v{V_DMA+3}, v{T}, vcc")
    p(f"s_lshl_b32 s{S_DM}, s{S_W}, 10")
    p(f"s_mov_b32 s{S_KW}, 0"); p(f"s_mov_b32 s{S_KX}, 0"); p(f"s_mov_b32 s{S_KF}, 0")
    p(f"s_mov_b32 s{S_RD}, 0"); p(f"s_mov_b32 s{S_CNT}, 0")
    for st in range(R):
        for e in q_dma_list(): p(e[1])
        for e in dm_advance(32 * 3 * D * 2, flex=True): p(e[1])
    for r in range(ACC, ACC + 144, 2): p(f"v_mov_b64 v[{r}:{r+1}], 0")
    p(f"s_waitcnt vmcnt({(R - 1) * 6})")
    p("s_barrier")
    for e in addr_update(False): p(e[1])
    for w in range(1, 4):
        p(f"s_cmp_eq_u32 s{S_W}, {w}")
        p(f"s_cbranch_scc1 L_q_wave{w}{tag}")
    for w in range(4):
        rh, ch = w >> 1, w & 1
        p.label(f"L_q_wave{w}{tag}")
        for e in q_reads(rh, ch, 0): p(e[1])
        gen_q_loop(p, rh, ch, tag)
        p("s_waitcnt vmcnt(0) lgkmcnt(0)")
        p("s_barrier")
        p(f"v_lshlrev_b32 v{V_EX0}, 3, v{L}")
        p(f"v_add_u32 v{V_EX}, {rh * 10240}, v{V_EX0}")
        q_export_halo(p, rh, ch)
        p(f"s_branch L_q_ex{ch}{tag}")
    for ch in (0, 1):
        p.label(f"L_q_ex{ch}{tag}")
        q_exchange(p, ch)
        if ch == 0: p(f"s_branch L_q_att{tag}")
    p.label(f"L_q_att{tag}")
    att_setup(p)
    p(f"v_mov_b32 v{T+13}, 0xf149f2ca")
    attention(p)
    p(f"s_branch {after}")

def gen_k1(p, name):
    kernel_head(p, name)
    p("s_cmp_ge_u32 s2, 256")
    p(f"s_cbranch_scc1 L_{name}_end")
    p(f"v_and_b32 v{V_LANE}, 63, v0")
    p("v_lshrrev_b32 v2, 6, v0")
    p("s_and_b32 s3, s2, 7")
    p("s_lshr_b32 s14, s2, 3")
    p(f"v_readfirstlane_b32 s{S_W}, v2")
    p("s_and_b32 s15, s3, 3")
    p(f"s_lshr_b32 s{S_J}, s15, 1")
    p(f"s_lshl_b32 s{S_J}, s{S_J}, 3")
    p(f"s_lshr_b32 s{S_T0}, s14, 2")
    p(f"s_add_u32 s{S_J}, s{S_J}, s{S_T0}")
    p(f"s_and_b32 s{S_I}, s15, 1")
    p(f"s_lshl_b32 s{S_I}, s{S_I}, 2")
    p(f"s_and_b32 s{S_T0}, s14, 3")
    p(f"s_add_u32 s{S_I}, s{S_I}, s{S_T0}")
    p("s_cmp_ge_u32 s3, 4")
    p("s_cbranch_scc1 L_role_h_k1")
    gen_q(p, "_k1", f"L_{name}_end")
    gen_h(p, "_k1", f"L_{name}_end")
    p.label(f"L_{name}_end")
    p("s_endpgm")
    p(KD.format(name=name, vgpr=512, sgpr=102, acc=256))
```

```python
from asmlib import *
from common import *

NSTEP = 19
NH = 14
NA = 6
NS = 7
SLAB = 5120

S_AF, S_W2, S_WO, S_OUT, S_G, S_B2, S_AFD, S_W2D = 16, 20, 24, 28, 32, 36, 40, 44
S_W, S_R, S_N, S_LB, S_SA, S_SW, S_T0, S_T1 = 50, 51, 52, 53, 54, 55, 56, 57
V_LANE = 1
V_A = 4
V_W = 8
V_T = 13
V_G = 14
V_TMP = 18
V_B2 = 40
ACCB = 64
ACCA = 144
A_RING = 0
A_WF = 96

def acc(base, b, cb): return base + 4 * (b * 5 + cb)

def p2_setup_ptrs(p):
    p(f"s_load_dwordx2 s[4:5], s[0:1], {KA_WO}")
    p(f"s_load_dwordx4 s[8:11], s[0:1], {KA_W2}")
    p(f"s_load_dwordx2 s[6:7], s[0:1], {KA_OUT}")
    p(f"s_load_dwordx2 s[12:13], s[0:1], {KA_WS}")

def p2_srds(p):
    srd(p, S_AF, 12, AF_BYTES)
    srd(p, S_W2, 8, F * D * 2)
    srd(p, S_WO, 4, D * D * 2)
    srd(p, S_OUT, 6, S * D * 2)
    srd(p, S_B2, 10, D * 2)
    p(f"s_add_u32 s12, s12, {G_OFF}")
    p("s_addc_u32 s13, s13, 0")
    srd(p, S_G, 12, G_BYTES)
    for dst, src, nb in ((S_AFD, S_AF, AF_BYTES), (S_W2D, S_W2, F * D * 2)):
        p(f"s_mov_b32 s{dst}, s{src}"); p(f"s_mov_b32 s{dst+1}, s{src+1}")
        p(f"s_cmp_lt_u32 s{S_W}, 2")
        p(f"s_cselect_b32 s{dst+2}, {nb}, 0")
        p(f"s_mov_b32 s{dst+3}, 0x20000")

def p2_lane_setup(p):
    L = V_LANE; t0, t1, t2 = V_TMP, V_TMP + 1, V_TMP + 2
    p(f"s_mul_i32 s{S_T0}, s{S_R}, {4 * KS_T * 1024}")
    p(f"s_lshl_b32 s{S_T1}, s{S_W}, 10")
    p(f"s_add_u32 s{S_T0}, s{S_T0}, s{S_T1}")
    p(f"v_lshlrev_b32 v{V_A}, 4, v{L}")
    p(f"v_add_u32 v{V_A}, s{S_T0}, v{V_A}")
    for b in range(1, 4):
        p(f"v_add_u32 v{V_A+b}, {b * KS_T * 1024}, v{V_A}")
    p(f"s_mul_i32 s{S_T0}, s{S_W}, {32 * 1280}")
    p(f"s_mul_i32 s{S_T1}, s{S_N}, 160")
    p(f"s_add_u32 s{S_T0}, s{S_T0}, s{S_T1}")
    for t in range(5):
        p(f"v_add_u32 v{t0}, {64 * t}, v{L}")
        div_const(p, t1, t0, 10, 319)
        p(f"v_mul_u32_u24 v{t2}, 10, v{t1}")
        p(f"v_sub_u32 v{t2}, v{t0}, v{t2}")
        p(f"v_mul_u32_u24 v{t1}, 1280, v{t1}")
        p(f"v_lshl_add_u32 v{t1}, v{t2}, 4, v{t1}")
        inst = t * 1024 if t < 4 else 0
        p(f"v_add_u32 v{V_W+t}, s{S_T0}, v{t1}")
        if inst: p(f"v_subrev_u32 v{V_W+t}, {inst}, v{V_W+t}")
    p(f"s_mul_i32 s{S_LB}, s{S_W}, {NS * SLAB}")
    p(f"v_lshrrev_b32 v{t0}, 2, v{L}")
    p(f"v_mul_u32_u24 v{t0}, 160, v{t0}")
    p(f"v_and_b32 v{t1}, 3, v{L}")
    p(f"v_lshl_add_u32 v{t0}, v{t1}, 3, v{t0}")
    p(f"v_add_u32 v{V_T}, s{S_LB}, v{t0}")

def step_consts(m):
    if m < NH:
        return dict(sa=m * 4096, sw=m * 4 * 32 * 1280, h=True)
    mm = m - NH
    return dict(sa=(KS_H + 4 * mm) * 1024, sw=mm * 4 * 32 * 1280, h=False)

def a_loads(p, vq, m, sc):
    c = step_consts(m)
    sr = S_AFD if m == NH - 1 else S_AF
    out = [f"s_mov_b32 s{S_SA}, {c['sa']}"]
    ins = []
    for b in range(4):
        r = A_RING + 16 * (m % NA) + 4 * b
        ins.append((f"buffer_load_dwordx4 a[{r}:{r+3}], v{V_A+b}, s[{sr}:{sr+3}], s{S_SA} offen {sc}", ("A", m)))
    return out, ins

def w_dmas(m):
    c = step_consts(m)
    sr = (S_W2D if m == NH - 1 else S_W2) if c["h"] else S_WO
    slab = (m % NS) * SLAB
    seq = [("s", f"s_add_u32 m0, s{S_LB}, {slab}"), ("s", f"s_mov_b32 s{S_SW}, {c['sw']}")]
    for t in range(5):
        if t == 4: seq.append(("sp", f"s_add_u32 m0, s{S_LB}, {slab + 4096}"))
        off = f" offset:{t * 1024}" if 0 < t < 4 else ""
        seq.append(("v", f"buffer_load_dwordx4 v{V_W+t}, s[{sr}:{sr+3}], s{S_SW} offen{off} lds", ("W", m)))
    return seq

def tr_reads(m):
    slab = (m % NS) * SLAB
    out = []
    for cb in range(5):
        r = A_WF + 20 * (m % 2) + 4 * cb
        out.append(f"ds_read_b64_tr_b16 a[{r}:{r+1}], v{V_T} offset:{slab + cb * 32}")
        out.append(f"ds_read_b64_tr_b16 a[{r+2}:{r+3}], v{V_T} offset:{slab + 2560 + cb * 32}")
    return out

def p2_prologue_loads(p, vq, sc):
    for m in range(NS):
        for e in w_dmas(m):
            p(e[1])
            if e[0] == "v": vq.issue(e[2])
        if m < NA - 1:
            pre, ins = a_loads(p, vq, m, sc)
            for x in pre: p(x)
            for x, tag in ins:
                p(x); vq.issue(tag)

def p2_misc_loads(p, vq):
    t0 = V_TMP
    p(f"v_and_b32 v{t0}, 15, v{V_LANE}")
    p(f"s_lshl_b32 s{S_T0}, s{S_R}, 8")
    p(f"v_lshl_add_u32 v{t0}, v{t0}, 2, s{S_T0}")
    for b in range(4):
        p(f"buffer_load_dword v{V_G+b}, v{t0}, s[{S_G}:{S_G+3}], 0 offen offset:{64 * b}"); vq.issue("G")

def p2_main(p, vq, sc):
    for r in range(ACCB, ACCA + 80, 2):
        p(f"v_mov_b64 v[{r}:{r+1}], 0")
    n = vq.count_for([("W", 0)]); p(f"s_waitcnt vmcnt({n})"); vq.retire(n)
    for x in tr_reads(0): p(x)
    for m in range(NSTEP):
        base = ACCB if m < NH else ACCA
        n = vq.count_for([("A", m)] + ([("W", m + 1)] if m + 1 < NSTEP else []))
        if n is None: p("s_waitcnt lgkmcnt(0)")
        else:
            p(f"s_waitcnt vmcnt({n}) lgkmcnt(0)"); vq.retire(n)
        fill = []
        if m + 1 < NSTEP: fill += [("d", x) for x in tr_reads(m + 1)]
        if m + NA - 1 < NSTEP:
            pre, ins = a_loads(p, vq, m + NA - 1, sc)
            fill += [("s", x) for x in pre] + [("v", x, tag) for x, tag in ins]
        if m + NS < NSTEP: fill += w_dmas(m + NS)
        gaps = [[] for _ in range(20)]
        gi = 0
        for e in fill:
            if e[0] == "s":
                gaps[min(gi, 19)].append(e)
            elif e[0] == "sp":
                gaps[min(gi, 19) - 1].append(e)
            else:
                gaps[min(gi, 19)].append(e); gi += 1
        k = 0
        for cb in range(5):
            for b in range(4):
                a = acc(base, b, cb)
                w = A_WF + 20 * (m % 2) + 4 * cb
                x = A_RING + 16 * (m % NA) + 4 * b
                p(f"v_mfma_f32_16x16x32_bf16 v[{a}:{a+3}], a[{w}:{w+3}], a[{x}:{x+3}], v[{a}:{a+3}]")
                for e in gaps[k]:
                    p(e[1])
                    if e[0] == "v": vq.issue(e[2])
                k += 1

def p2_final(p, vq):
    L = V_LANE; T = V_TMP
    p(f"v_lshrrev_b32 v{T}, 4, v{L}")
    p(f"s_mul_i32 s{S_T0}, s{S_N}, 160")
    p(f"v_lshl_add_u32 v{T}, v{T}, 3, s{S_T0}")
    for cb in range(5):
        p(f"buffer_load_dwordx2 v[{V_TMP+2+2*cb}:{V_TMP+3+2*cb}], v{T}, s[{S_B2}:{S_B2+3}], 0 offen offset:{32 * cb}"); vq.issue("B2")
    p("s_waitcnt vmcnt(5)")
    for b in range(4):
        g = V_G + b
        p(f"v_sub_f32 v{T+12}, 1.0, v{g}")
        for cb in range(5):
            for h in (0, 2):
                A_ = acc(ACCA, b, cb) + h; B_ = acc(ACCB, b, cb) + h
                p(f"v_pk_mul_f32 v[{B_}:{B_+1}], v[{B_}:{B_+1}], v[{T+12}:{T+13}] op_sel_hi:[1,0]")
                p(f"v_pk_fma_f32 v[{A_}:{A_+1}], v[{A_}:{A_+1}], v[{g}:{g+1}], v[{B_}:{B_+1}] op_sel_hi:[1,0,1]" if g % 2 == 0 else
                  f"v_pk_fma_f32 v[{A_}:{A_+1}], v[{A_}:{A_+1}], v[{g-1}:{g}], v[{B_}:{B_+1}] op_sel:[0,1,0] op_sel_hi:[1,1,1]")
    p("s_barrier")
    p(f"v_lshlrev_b32 v{T+14}, 4, v{L}")
    p(f"s_mul_i32 s{S_T0}, s{S_W}, 5120")
    p(f"v_add_u32 v{T+14}, s{S_T0}, v{T+14}")
    p(f"v_add_u32 v{T+15}, 40960, v{T+14}")
    for w in range(4):
        p(f"s_cmp_lg_u32 s{S_W}, {w}")
        p(f"s_cbranch_scc1 L_p2_red_skip{w}")
        for k in range(1, 4):
            d = (w + k) & 3
            for cb in range(5):
                a = acc(ACCA, d, cb)
                p(f"ds_write_b128 v{T+14+(d>>1)}, v[{a}:{a+3}] offset:{(d&1) * 20480 + cb * 1024}")
        for cb in range(5):
            a = acc(ACCA, w, cb); bdst = acc(ACCB, 0, cb)
            p(f"v_mov_b64 v[{bdst}:{bdst+1}], v[{a}:{a+1}]")
            p(f"v_mov_b64 v[{bdst+2}:{bdst+3}], v[{a+2}:{a+3}]")
        p(f"v_mov_b32 v{T+12}, v{V_G+w}")
        p.label(f"L_p2_red_skip{w}")
    p("s_waitcnt lgkmcnt(0)")
    p("s_barrier")
    p(f"v_lshlrev_b32 v{T+14}, 4, v{L}")
    p(f"s_mul_i32 s{S_T0}, s{S_W}, 20480")
    p(f"v_add_u32 v{T+14}, s{S_T0}, v{T+14}")
    for k in range(1, 4):
        p(f"s_add_u32 s{S_T1}, s{S_W}, {k}")
        p(f"s_and_b32 s{S_T1}, s{S_T1}, 3")
        p(f"s_mul_i32 s{S_T1}, s{S_T1}, 5120")
        p(f"v_add_u32 v{T+15+k}, s{S_T1}, v{T+14}")
        for cb in range(5):
            r = ACCA + 4 * ((k - 1) * 5 + cb)
            p(f"ds_read_b128 v[{r}:{r+3}], v{T+15+k} offset:{cb * 1024}")
    p(f"v_sub_f32 v{T+12}, 1.0, v{T+12}")
    p("s_waitcnt vmcnt(0)")
    for cb in range(5):
        lo, hi = V_TMP + 2 + 2 * cb, V_TMP + 3 + 2 * cb
        r = V_B2 + 4 * cb
        p(f"v_lshlrev_b32 v{r}, 16, v{lo}"); p(f"v_and_b32 v{r+1}, 0xffff0000, v{lo}")
        p(f"v_lshlrev_b32 v{r+2}, 16, v{hi}"); p(f"v_and_b32 v{r+3}, 0xffff0000, v{hi}")
    for cb in range(5):
        r = V_B2 + 4 * cb; o = acc(ACCB, 0, cb)
        for h in (0, 2):
            p(f"v_pk_fma_f32 v[{o+h}:{o+h+1}], v[{r+h}:{r+h+1}], v[{T+12}:{T+13}], v[{o+h}:{o+h+1}] op_sel_hi:[1,0,1]")
    for k in range(1, 4):
        p(f"s_waitcnt lgkmcnt({5 * (3 - k)})")
        for cb in range(5):
            r = ACCA + 4 * ((k - 1) * 5 + cb); o = acc(ACCB, 0, cb)
            for h in (0, 2):
                p(f"v_pk_add_f32 v[{o+h}:{o+h+1}], v[{o+h}:{o+h+1}], v[{r+h}:{r+h+1}]")
    TR = 81920
    p(f"v_and_b32 v{T}, 15, v{L}")
    p(f"v_mul_u32_u24 v{T}, 176, v{T}")
    p(f"v_lshrrev_b32 v{T+1}, 4, v{L}")
    p(f"v_lshl_add_u32 v{T}, v{T+1}, 3, v{T}")
    p(f"s_mul_i32 s{S_T0}, s{S_W}, 2816")
    p(f"s_add_u32 s{S_T0}, s{S_T0}, {TR}")
    p(f"v_add_u32 v{T}, s{S_T0}, v{T}")
    for cb in range(5):
        o = acc(ACCB, 0, cb); r = V_B2 + 2 * cb
        p(f"v_cvt_pk_bf16_f32 v{r}, v{o}, v{o+1}")
        p(f"v_cvt_pk_bf16_f32 v{r+1}, v{o+2}, v{o+3}")
        p(f"ds_write_b64 v{T}, v[{r}:{r+1}] offset:{32 * cb}")
    p(f"s_lshl_b32 s{S_T1}, s{S_R}, 6")
    p(f"s_lshl_b32 s{S_SA}, s{S_W}, 4")
    p(f"s_add_u32 s{S_T1}, s{S_T1}, s{S_SA}")
    p(f"s_mul_i32 s{S_T1}, s{S_T1}, 1280")
    p(f"s_mul_i32 s{S_SA}, s{S_N}, 160")
    p(f"s_add_u32 s{S_T1}, s{S_T1}, s{S_SA}")
    for j in range(3):
        p(f"v_add_u32 v{T+2}, {64 * j}, v{L}")
        div_const(p, T + 3, T + 2, 10, 191)
        p(f"v_mul_u32_u24 v{T+4}, 10, v{T+3}")
        p(f"v_sub_u32 v{T+4}, v{T+2}, v{T+4}")
        p(f"v_mul_u32_u24 v{T+5}, 176, v{T+3}")
        p(f"v_lshl_add_u32 v{T+5}, v{T+4}, 4, v{T+5}")
        p(f"v_add_u32 v{T+5+0}, s{S_T0}, v{T+5}")
        p(f"v_mul_u32_u24 v{T+3}, 1280, v{T+3}")
        p(f"v_lshl_add_u32 v{T+3}, v{T+4}, 4, v{T+3}")
        p(f"v_add_u32 v{T+6+j}, s{S_T1}, v{T+3}")
        if j == 2:
            p(f"v_cmp_gt_u32 vcc, 160, v{T+2}")
            p(f"v_cndmask_b32 v{T+6+j}, -1, v{T+6+j}, vcc")
            p(f"v_cndmask_b32 v{T+5}, 0, v{T+5}, vcc")
        p("s_waitcnt lgkmcnt(0)")
        r = ACCA + 4 * j
        p(f"ds_read_b128 v[{r}:{r+3}], v{T+5}")
    p("s_waitcnt lgkmcnt(0)")
    for j in range(3):
        r = ACCA + 4 * j
        p(f"buffer_store_dwordx4 v[{r}:{r+3}], v{T+6+j}, s[{S_OUT}:{S_OUT+3}], 0 offen")

def gen_k2(p, name):
    kernel_head(p, name)
    p("s_cmp_ge_u32 s2, 256")
    p(f"s_cbranch_scc1 L_{name}_end")
    p2_setup_ptrs(p)
    p(f"v_and_b32 v{V_LANE}, 63, v0")
    p("v_lshrrev_b32 v2, 6, v0")
    p("s_and_b32 s3, s2, 7")
    p("s_lshr_b32 s14, s2, 3")
    p(f"v_readfirstlane_b32 s{S_W}, v2")
    p(f"s_lshr_b32 s{S_R}, s14, 3")
    p(f"s_lshl_b32 s3, s3, 2")
    p(f"s_add_u32 s{S_R}, s{S_R}, s3")
    p(f"s_and_b32 s{S_N}, s14, 7")
    p2_lane_setup(p)
    p("s_waitcnt lgkmcnt(0)")
    p2_srds(p)
    vq = VmQ()
    p2_misc_loads(p, vq)
    p2_prologue_loads(p, vq, "")
    p2_main(p, vq, "")
    p2_final(p, vq)
    p.label(f"L_{name}_end")
    p("s_endpgm")
    p(KD.format(name=name, vgpr=512, sgpr=102, acc=256))
```

```python
import sys
sys.path.insert(0, "gen")
from asmlib import *
from common import *
import phase1, phase2

NAME = "gated_mix__sliding_local_dilated__dense_activation_squared_relu__prompt"
HEADER = open("cdna_kernels/%s.s.ref" % NAME).read().split("; Override launch geometry")[0]

def build_two(path):
    p = Prog()
    p.lines += HEADER.rstrip("\n").split("\n")
    p.lines.append("; @launch kernel=gm_phase1_kernel grid=(256,1,1) block=(256,1,1) lds=%d" % (phase1.R * phase1.SLOT))
    p.lines.append("; @launch kernel=gm_phase2_kernel grid=(256,1,1) block=(256,1,1) lds=%d" % (4 * phase2.NS * phase2.SLAB))
    p('.amdgcn_target "amdgcn-amd-amdhsa--gfx950"'); p(".text")
    phase1.gen_k1(p, "gm_phase1_kernel")
    phase2.gen_k2(p, "gm_phase2_kernel")
    head = [l for l in p.lines if l.startswith(";") ]
    body = p.lines[len(head):]
    body, n = pad_hazards_fast(body)
    open(path, "w").write("\n".join(head + body) + "\n")
    print("written", path, "nops", n, "lines", len(body))

if __name__ == "__main__":
    build_two(sys.argv[1] if len(sys.argv) > 1 else "two.s")
```

```python
S, D, F, H, DH = 2048, 640, 1728, 32, 20
KS_H, KS_O = F // 32, D // 32
KS_T = KS_H + KS_O
AF_BYTES = (S // 16) * KS_T * 1024
G_OFF = AF_BYTES
G_BYTES = (S // 16) * 4 * 256
STAMP_OFF = G_OFF + G_BYTES

KA_AX, KA_WQKV, KA_WO, KA_BX, KA_W1, KA_B1, KA_W2, KA_B2, KA_GW, KA_OUT, KA_DBG, KA_WS = [8 * i for i in range(12)]

def srd(p, s, base_lo, nbytes):
    p(f"s_mov_b32 s{s}, s{base_lo}")
    p(f"s_and_b32 s{s+1}, s{base_lo+1}, 0xffff")
    p(f"s_mov_b32 s{s+2}, {nbytes}")
    p(f"s_mov_b32 s{s+3}, 0x20000")

def div_const(p, dst, src, d, maxval, tmp=None):
    for sh in range(16, 24):
        m = -(-(1 << sh) // d)
        if all((x * m) >> sh == x // d for x in range(maxval + 1)) and m * maxval < (1 << 32) and m < (1 << 24):
            p(f"v_mul_u32_u24 v{dst}, {m}, v{src}")
            p(f"v_lshrrev_b32 v{dst}, {sh}, v{dst}")
            return
    raise ValueError("no magic")

KD = """.section .rodata,"a"
.p2align 6
.amdhsa_kernel {name}
  .amdhsa_next_free_vgpr {vgpr}
  .amdhsa_next_free_sgpr {sgpr}
  .amdhsa_accum_offset {acc}
  .amdhsa_group_segment_fixed_size 0
  .amdhsa_kernarg_size 96
  .amdhsa_user_sgpr_count 2
  .amdhsa_user_sgpr_kernarg_segment_ptr 1
  .amdhsa_system_sgpr_workgroup_id_x 1
.end_amdhsa_kernel
.text
"""

def kernel_head(p, name):
    p(f".globl {name}")
    p(".p2align 8")
    p(f".type {name},@function")
    p.label(name)

DIAG = False
CYC = False
STAMP_REGS = {"k1": [44, 46, 48, 96, 98, 100], "k2": [60, 62, 64, 66, 68, 70], "f": [44, 46, 48, 96, 98, 100]}
def stamp(p, kind, i):
    import common
    if common.DIAG:
        r = STAMP_REGS[kind][i]
        p(f"{'s_memtime' if common.CYC else 's_memrealtime'} s[{r}:{r+1}]")
def stamp_flush(p, kind, slot, s_wave, ws_lo, tmpv, s_tmp, srd_s):
    import common
    if not common.DIAG: return
    p("s_waitcnt vmcnt(0) lgkmcnt(0)")
    p(f"s_load_dwordx2 s[{ws_lo}:{ws_lo+1}], s[0:1], {KA_WS}")
    p("s_waitcnt lgkmcnt(0)")
    p(f"s_add_u32 s{ws_lo}, s{ws_lo}, {STAMP_OFF}")
    p(f"s_addc_u32 s{ws_lo+1}, s{ws_lo+1}, 0")
    srd(p, srd_s, ws_lo, 1 << 20)
    p(f"s_lshl_b32 s{s_tmp}, s2, 2")
    p(f"s_add_u32 s{s_tmp}, s{s_tmp}, s{s_wave}")
    p(f"s_lshl_b32 s{s_tmp}, s{s_tmp}, 7")
    p(f"s_add_u32 s{s_tmp}, s{s_tmp}, {slot * 64}")
    for i, r in enumerate(STAMP_REGS[kind]):
        p(f"v_mov_b32 v{tmpv}, s{r}"); p(f"v_mov_b32 v{tmpv+1}, s{r+1}")
        p(f"v_mov_b32 v{tmpv+2}, s{s_tmp}")
        p(f"buffer_store_dwordx2 v[{tmpv}:{tmpv+1}], v{tmpv+2}, s[{srd_s}:{srd_s+3}], 0 offen offset:{8 * i}")
        p("s_waitcnt vmcnt(0)")

import os
EXP = set(os.environ.get("EXP", "").split(","))
```

```python
from asmlib import *
from common import *
import common, os

NK = 20
NSTG = 10
RING = 3
WP_OFF = G_OFF + G_BYTES
WP_BYTES = 8 * KS_T * 5 * 1024
WS_END = WP_OFF + WP_BYTES
common.STAMP_OFF = WS_END
DBG_H, DBG_Q, DBG_WP = 0, 32, 48

S_X, S_WT, S_FX, S_AF, S_WP, S_AUX, S_AUX2, S_OUT = 16, 20, 24, 28, 32, 36, 40, 44
S_DBG = 48
S_W, S_J, S_I = 50, 51, 52
S_RD, S_DM, S_KW, S_KX, S_KF, S_FD, S_FSTEP, S_CNT = 53, 54, 55, 56, 57, 58, 59, 60
S_T0, S_T1, S_T2 = 61, 62, 63
S_XSZ, S_WSZ, S_FSZ, S_WOFS = 64, 65, 66, 67
S_T3 = 15
S_PAR = 14
S_MASK = 68
S_SO = 90
S_R2, S_N2 = 95, 96
S_SA, S_SW = 97, 3
KP = 68
P_AX, P_WQKV, P_WO, P_W1, P_B1, P_W2, P_B2, P_GW, P_OUT, P_DBG, P_WS = 68, 70, 72, 76, 78, 80, 82, 84, 86, 88, 90
STAMPS = [98, 100, 4, 6, 8, 10, 12]

V_LANE = 1
V_DMA = 4
ACC = 16
V_XB0, V_XB1, V_WB0, V_WB1 = 240, 241, 242, 243
V_XA0, V_XA1, V_WA0, V_WA1 = 244, 245, 246, 247
V_T = 248
V_PW = 240
V_PA = 244
A_X = 0
A_WF = 40
NWR, NAR = 7, 6
A_WR = 0
A_AR = 140
ACCB, ACCA = 64, 144
V_G = 16
V_B2 = 20

def fstamp(p, i):
    if common.DIAG:
        r = STAMPS[i]
        p(f"{'s_memtime' if common.CYC else 's_memrealtime'} s[{r}:{r+1}]")

class Sched:
    COST = {"d": 2, "v": 3, "s": 1, "a": 1}
    def __init__(self, mfmas):
        self.m = mfmas
        self.g = [[] for _ in mfmas]
        self.load = [0] * len(mfmas)
    def put(self, gap, kind, text):
        gap = max(0, min(gap, len(self.m) - 1))
        self.g[gap].append((kind, text)); self.load[gap] += self.COST[kind]
    def first_fit(self, kind, text, lo, hi=None):
        hi = len(self.m) - 1 if hi is None else hi
        c = self.COST[kind]
        for g in range(max(lo, 0), hi + 1):
            if self.load[g] + c <= 3:
                self.put(g, kind, text); return g
        g = min(range(max(lo, 0), hi + 1), key=lambda x: self.load[x])
        self.put(g, kind, text); return g
    def emit(self, p):
        for m, g in zip(self.m, self.g):
            p(m)
            for k, t in g: p(t)

def schedule_step(mfmas, ds, dmas, pre_scalars, post_scalars, ds_from=0):
    S = Sched(mfmas)
    n = len(mfmas); nd = len(dmas)
    last = n - 3
    pos = [int((k + 0.6) * (last - 1) / nd) + 1 for k in range(nd)] if nd else []
    for (m0, dma), g in zip(dmas, pos): S.put(g, "v", dma)
    for (m0, dma), g in zip(dmas, pos):
        if m0:
            prev = max([q for q in pos if q < g], default=-1)
            cand = [x for x in range(prev + 1, g) if S.load[x] <= 2]
            S.put(cand[-1] if cand else g - 1, "s", m0)
    g = 0
    for t in pre_scalars:
        g = S.first_fit("s", t, g, (pos[0] - 1) if pos else None)
    g = ds_from; lastds = 0
    for t in ds:
        g = S.first_fit("d", t, g); lastds = g; g += 1
    g = max(lastds, pos[-1] if pos else 0)
    for k, t in post_scalars:
        g = S.first_fit(k, t, g)
    return S

def build_srd(p, s, ptr, nbytes, add=0):
    if add:
        p(f"s_add_u32 s{s}, s{ptr}, {add}")
        p(f"s_addc_u32 s{s+1}, s{ptr+1}, 0")
        p(f"s_and_b32 s{s+1}, s{s+1}, 0xffff")
    else:
        p(f"s_mov_b32 s{s}, s{ptr}")
        p(f"s_and_b32 s{s+1}, s{ptr+1}, 0xffff")
    p(f"s_mov_b32 s{s+2}, {nbytes}")
    p(f"s_mov_b32 s{s+3}, 0x20000")

def swap23(p, dst, src, tmp, mask):
    p(f"v_and_b32 v{dst}, {mask:#x}, v{src}")
    p(f"v_and_b32 v{tmp}, 4, v{src}")
    p(f"v_lshl_add_u32 v{dst}, v{tmp}, 1, v{dst}")
    p(f"v_and_b32 v{tmp}, 8, v{src}")
    p(f"v_lshrrev_b32 v{tmp}, 1, v{tmp}")
    p(f"v_add_u32 v{dst}, v{dst}, v{tmp}")

def signal(p, dword_sgpr_or_const, label):
    p(f"s_cmp_lg_u32 s{S_W}, 0")
    p(f"s_cbranch_scc1 {label}")
    p(f"v_mov_b32 v2, {dword_sgpr_or_const}")
    p("v_mov_b32 v3, 1")
    p("s_mov_b64 exec, 1")
    p(f"global_atomic_add v2, v3, s[{S_DBG}:{S_DBG+1}] sc1")
    p("s_mov_b64 exec, -1")
    p.label(label)

SPIN_LIMIT = 400000
POLL_SLEEP = int(os.environ.get("POLL_SLEEP", "4"))
def poll_loop(p, byte_off_src, target, label):
    p(f"v_mov_b32 v2, {byte_off_src}")
    p(f"s_mov_b32 s{S_T3}, {SPIN_LIMIT}")
    p.label(label)
    p(f"global_load_dword v3, v2, s[{S_DBG}:{S_DBG+1}] sc1")
    p(f"s_sub_u32 s{S_T3}, s{S_T3}, 1")
    p(f"s_cbranch_scc1 {label}_out")
    p("s_waitcnt vmcnt(0)")
    p(f"v_readfirstlane_b32 s{S_T0}, v3")
    p("s_nop 3")
    p(f"s_cmp_ge_u32 s{S_T0}, {target}")
    p(f"s_cbranch_scc1 {label}_out")
    if POLL_SLEEP: p(f"s_sleep {POLL_SLEEP}")
    p(f"s_branch {label}")
    p.label(f"{label}_out")

def wait_counter(p, byte_off_src, target, label):
    p(f"s_cmp_lg_u32 s{S_W}, 0")
    p(f"s_cbranch_scc1 {label}_skip")
    poll_loop(p, byte_off_src, target, label)
    p.label(f"{label}_skip")
    p("s_barrier")
```

```python
from fz_common import *
from fz_q import lane_bases, x_dma_lane

HP = 448
HXOFF = 64 * HP
HSTG = HXOFF + 128 * 128
RP_LDS = RING * HSTG
GX, GW_, B1 = 160, 180, 200

def h_dmas():
    def W(q): return (f"s_add_u32 m0, s{S_DM}, {q * 4096}", f"buffer_load_dwordx4 v{V_DMA+q}, s[{S_WT}:{S_WT+3}], s{S_KW} offen lds")
    def X(q): return (f"s_add_u32 m0, s{S_DM}, {HXOFF + q * 4096}", f"buffer_load_dwordx4 v{V_DMA+8+q}, s[{S_X}:{S_X+3}], s{S_KX} offen lds")
    return [W(0), W(1), X(0), W(2), X(1)], [W(3), W(4), X(2), W(5), X(3), W(6)]

def h_reads(half, par):
    xa = V_XA0 if half == 0 else V_XA1
    xs = [f"ds_read_b128 a[{A_X+20*par+4*b}:{A_X+20*par+4*b+3}], v{xa} offset:{b * 2048}" for b in range(4)]
    ws = []
    for c in range(7):
        r = A_WF + 32 * par + 4 * c
        va = V_WA0 if c % 2 == 0 else V_WA1
        ws.append(f"ds_read_b64_tr_b16 a[{r}:{r+1}], v{va} offset:{32 * half * HP + c * 32}")
        ws.append(f"ds_read_b64_tr_b16 a[{r+2}:{r+3}], v{va} offset:{(32 * half + 8) * HP + c * 32}")
    return ws[:2] + xs + ws[2:]

def h_mfmas(par):
    out = []
    for c in range(7):
        for b in range(4):
            a = ACC + 4 * (b * 7 + c); w = A_WF + 32 * par + 4 * c; x = A_X + 20 * par + 4 * b
            out.append(f"v_mfma_f32_16x16x32_bf16 v[{a}:{a+3}], a[{w}:{w+3}], a[{x}:{x+3}], v[{a}:{a+3}]")
    return out

def h_setup(p):
    L = V_LANE; T = ACC
    p(f"s_mul_i32 s{S_T1}, s{S_I}, 224")
    p(f"s_min_u32 s{S_T1}, s{S_T1}, 1504")
    p(f"s_lshl_b32 s{S_T2}, s{S_T1}, 1")
    lane_bases(p, T, HP, HXOFF)
    p(f"v_lshlrev_b32 v{T+1}, 5, v{T+1}")
    p(f"v_sub_u32 v{V_WB1}, v{V_WB0}, v{T+1}")
    p(f"v_add_u32 v{V_WB0}, v{V_WB0}, v{T+1}")
    p(f"s_cmp_ge_u32 s{S_W}, 2")
    p("s_cselect_b64 vcc, -1, 0")
    p(f"v_add_u32 v{T}, {7 * 32}, v{V_WB0}")
    p(f"v_add_u32 v{T+1}, {7 * 32}, v{V_WB1}")
    p(f"v_cndmask_b32 v{V_WB0}, v{V_WB0}, v{T+1}, vcc")
    p(f"v_cndmask_b32 v{V_WB1}, v{V_WB1}, v{T}, vcc")
    p(f"s_and_b32 s{S_T0}, s{S_W}, 1")
    p(f"s_lshl_b32 s{S_T0}, s{S_T0}, 13")
    p(f"v_add_u32 v{V_XB0}, s{S_T0}, v{V_XB0}")
    p(f"v_add_u32 v{V_XB1}, s{S_T0}, v{V_XB1}")
    p(f"s_lshl_b32 s{S_T0}, s{S_W}, 6")
    p(f"v_add_u32 v{T+8}, s{S_T0}, v{L}")
    for q in range(7):
        if q: p(f"v_add_u32 v{T+8}, 256, v{T+8}")
        div_const(p, T + 1, T + 8, 28, 1791)
        p(f"v_mul_u32_u24 v{T+2}, 28, v{T+1}")
        p(f"v_sub_u32 v{T+2}, v{T+8}, v{T+2}")
        p(f"v_lshrrev_b32 v{T+3}, 1, v{T+1}")
        p(f"v_and_b32 v{T+3}, 2, v{T+3}")
        p(f"v_xor_b32 v{T+2}, v{T+2}, v{T+3}")
        swap23(p, T + 3, T + 1, T + 4, 0x33)
        p(f"v_mul_u32_u24 v{T+3}, {F * 2}, v{T+3}")
        p(f"v_lshl_add_u32 v{T+3}, v{T+2}, 4, v{T+3}")
        p(f"v_add_u32 v{V_DMA+q}, s{S_T2}, v{T+3}")
    p(f"s_lshl_b32 s{S_T0}, s{S_J}, 7")
    p(f"s_lshl_b32 s{S_T1}, s{S_W}, 3")
    p(f"s_add_u32 s{S_T0}, s{S_T0}, s{S_T1}")
    p(f"s_mul_i32 s{S_T0}, s{S_T0}, 1280")
    x_dma_lane(p, V_DMA + 8, T, S_T0)
    for q in range(1, 4): p(f"v_add_u32 v{V_DMA+8+q}, {q * 32 * 1280}, v{V_DMA+8}")

S_RU, S_RKS, S_RC = 92, 93, 94
def repack_issue(p, tag):
    L = V_LANE; T = 216
    p(f"s_lshl_b32 s{S_T0}, s{S_J}, 3")
    p(f"s_add_u32 s{S_T0}, s{S_T0}, s{S_I}")
    p(f"s_mul_i32 s{S_RU}, s{S_T0}, 3")
    p(f"s_add_u32 s{S_RU}, s{S_RU}, s{S_W}")
    p(f"s_cmp_eq_u32 s{S_W}, 3")
    p(f"s_cselect_b32 s{S_RU}, 999, s{S_RU}")
    p(f"s_cmp_ge_u32 s{S_RU}, {KS_T * 5}")
    p(f"s_cbranch_scc1 L_rp_noissue{tag}")
    p(f"s_mul_hi_u32 s{S_RKS}, s{S_RU}, {-(-(1 << 32) // 5)}")
    p(f"s_mul_i32 s{S_T0}, s{S_RKS}, 5")
    p(f"s_sub_u32 s{S_RC}, s{S_RU}, s{S_T0}")
    p(f"s_cmp_lt_u32 s{S_RKS}, {KS_H}")
    p(f"s_cselect_b32 s{S_FX}, s{P_W2}, s{P_WO}")
    p(f"s_cselect_b32 s{S_FX+1}, s{P_W2+1}, s{P_WO+1}")
    p(f"s_cselect_b32 s{S_T0}, 0, {KS_H}")
    p(f"s_mov_b32 s{S_T1}, {D * D * 2}")
    p(f"s_cselect_b32 s{S_FX+2}, {F * D * 2}, s{S_T1}")
    p(f"s_and_b32 s{S_FX+1}, s{S_FX+1}, 0xffff")
    p(f"s_mov_b32 s{S_FX+3}, 0x20000")
    p(f"s_sub_u32 s{S_T0}, s{S_RKS}, s{S_T0}")
    p(f"s_mul_i32 s{S_T0}, s{S_T0}, {32 * 1280}")
    p(f"s_lshl_b32 s{S_T1}, s{S_RC}, 8")
    p(f"s_add_u32 s{S_T0}, s{S_T0}, s{S_T1}")
    p(f"v_lshrrev_b32 v{T}, 4, v{L}")
    p(f"v_lshlrev_b32 v{T+1}, 1, v{T}")
    p(f"v_xor_b32 v{T+1}, v{T+1}, v{L}")
    p(f"v_and_b32 v{T+1}, 15, v{T+1}")
    p(f"v_xor_b32 v{T+2}, 8, v{T+1}")
    p(f"v_mul_u32_u24 v{T}, 1280, v{T}")
    p(f"v_lshl_add_u32 v{T+1}, v{T+1}, 4, v{T}")
    p(f"v_lshl_add_u32 v{T+2}, v{T+2}, 4, v{T}")
    p(f"s_lshl_b32 s{S_T1}, s{S_W}, 13")
    p(f"s_add_u32 s{S_T1}, s{S_T1}, {RP_LDS}")
    for t in range(8):
        p(f"s_add_u32 m0, s{S_T1}, {t * 1024}")
        p(f"s_add_u32 s{S_T3}, s{S_T0}, {t * 4 * 1280}")
        p(f"buffer_load_dwordx4 v{T+1+(t&1)}, s[{S_FX}:{S_FX+3}], s{S_T3} offen lds")
    p.label(f"L_rp_noissue{tag}")

def repack_finish(p, tag, younger):
    L = V_LANE; T = 216; FR = 216 + 8
    p(f"s_cmp_ge_u32 s{S_RU}, {KS_T * 5}")
    p(f"s_cbranch_scc1 L_rp_nofin{tag}")
    p(f"v_lshrrev_b32 v{T}, 2, v{L}")
    p(f"v_and_b32 v{T+1}, 7, v{T}")
    p(f"v_lshlrev_b32 v{T+1}, 5, v{T+1}")
    p(f"v_lshl_add_u32 v{T}, v{T}, 8, v{T+1}")
    p(f"v_and_b32 v{T+1}, 3, v{L}")
    p(f"v_lshl_add_u32 v{T}, v{T+1}, 3, v{T}")
    p(f"s_lshl_b32 s{S_T1}, s{S_W}, 13")
    p(f"s_add_u32 s{S_T1}, s{S_T1}, {RP_LDS}")
    p(f"v_add_u32 v{T}, s{S_T1}, v{T}")
    p(f"v_lshlrev_b32 v{T+3}, 4, v{L}")
    p(f"s_waitcnt vmcnt({younger})")
    for batch in range(2):
        for k in range(4):
            cb8 = 4 * batch + k
            p(f"v_xor_b32 v{T+2}, {cb8 * 32}, v{T}")
            p(f"ds_read_b64_tr_b16 v[{FR+4*k}:{FR+4*k+1}], v{T+2}")
            p(f"ds_read_b64_tr_b16 v[{FR+4*k+2}:{FR+4*k+3}], v{T+2} offset:{16 * 256}")
        for k in range(4):
            cb8 = 4 * batch + k
            p(f"s_lshl_b32 s{S_T0}, s{S_RC}, 3")
            p(f"s_add_u32 s{S_T0}, s{S_T0}, {cb8}")
            p(f"s_mul_i32 s{S_T1}, s{S_T0}, 205")
            p(f"s_lshr_b32 s{S_T1}, s{S_T1}, 10")
            p(f"s_mul_i32 s{S_T3}, s{S_T1}, 5")
            p(f"s_sub_u32 s{S_T0}, s{S_T0}, s{S_T3}")
            p(f"s_mul_i32 s{S_T1}, s{S_T1}, {KS_T}")
            p(f"s_add_u32 s{S_T1}, s{S_T1}, s{S_RKS}")
            p(f"s_mul_i32 s{S_T1}, s{S_T1}, 5")
            p(f"s_add_u32 s{S_T1}, s{S_T1}, s{S_T0}")
            p(f"s_lshl_b32 s{S_T1}, s{S_T1}, 10")
            p(f"s_waitcnt lgkmcnt({2 * (3 - k)})")
            p(f"buffer_store_dwordx4 v[{FR+4*k}:{FR+4*k+3}], v{T+3}, s[{S_WP}:{S_WP+3}], s{S_T1} offen sc1")
    p.label(f"L_rp_nofin{tag}")

SIDE_LDS = RP_LDS + 3 * 8192
def h_side_issue(p, tag):
    L = V_LANE; T = 216
    p(f"s_cmp_lg_u32 s{S_W}, 3")
    p(f"s_cbranch_scc1 L_side_skip{tag}")
    p(f"v_lshlrev_b32 v{T}, 4, v{L}")
    p(f"s_mov_b32 m0, {SIDE_LDS}")
    p(f"v_add_u32 v{T+1}, 1024, v{T}")
    p(f"buffer_load_dwordx4 v{T}, s[{S_AUX2}:{S_AUX2+3}], 0 offen lds")
    p(f"s_mov_b32 m0, {SIDE_LDS + 1024}")
    p(f"v_add_u32 v{T+2}, s{S_FD}, v{T}")
    p(f"buffer_load_dwordx4 v{T+1}, s[{S_AUX2}:{S_AUX2+3}], 0 offen lds")
    p(f"s_mov_b32 m0, {SIDE_LDS + 2048}")
    p("s_nop 0")
    p(f"buffer_load_dwordx4 v{T+2}, s[{S_AUX}:{S_AUX+3}], 0 offen lds")
    p.label(f"L_side_skip{tag}")

def h_gate_issue(p):
    L = V_LANE; T = V_T
    p(f"s_lshl_b32 s{S_T0}, s{S_J}, 7")
    p(f"s_lshl_b32 s{S_T1}, s{S_I}, 4")
    p(f"s_add_u32 s{S_T0}, s{S_T0}, s{S_T1}")
    p(f"s_lshl_b32 s{S_T1}, s{S_W}, 2")
    p(f"s_add_u32 s{S_T0}, s{S_T0}, s{S_T1}")
    p(f"v_lshrrev_b32 v{T}, 4, v{L}")
    p(f"v_add_u32 v{T+6}, s{S_T0}, v{T}")
    p(f"v_mul_u32_u24 v{T}, 1280, v{T+6}")
    p(f"v_and_b32 v{T+1}, 15, v{L}")
    p(f"v_lshlrev_b32 v{T+1}, 4, v{T+1}")
    p(f"v_add_u32 v{T}, v{T}, v{T+1}")
    for t in range(5):
        p(f"buffer_load_dwordx4 v[{GX+4*t}:{GX+4*t+3}], v{T}, s[{S_AUX2}:{S_AUX2+3}], 0 offen offset:{256 * t}")
    p(f"v_add_u32 v{T+1}, {SIDE_LDS}, v{T+1}")
    for t in range(5):
        p(f"ds_read_b128 v[{GW_+4*t}:{GW_+4*t+3}], v{T+1} offset:{256 * t}")
    p(f"s_lshr_b32 s{S_T0}, s{S_W}, 1")
    p(f"s_mul_i32 s{S_T0}, s{S_T0}, 224")
    p(f"s_add_u32 s{S_T0}, s{S_T0}, {SIDE_LDS + 2048}")
    p(f"v_lshrrev_b32 v{T}, 4, v{L}")
    p(f"v_lshl_add_u32 v{T}, v{T}, 3, s{S_T0}")
    for c in range(7):
        p(f"ds_read_b64 v[{B1+2*c}:{B1+2*c+1}], v{T} offset:{32 * c}")

def h_gate(p, gsrd):
    L = V_LANE; T = V_T + 2
    p(f"v_mov_b32 v{T}, 0")
    p(f"v_mov_b32 v{T+1}, 0")
    for t in range(10):
        p(f"v_dot2_f32_bf16 v{T}, v{GX+t}, v{GW_+t}, v{T}")
        p(f"v_dot2_f32_bf16 v{T+1}, v{GX+10+t}, v{GW_+10+t}, v{T+1}")
    p(f"v_add_f32 v{T}, v{T}, v{T+1}")
    for rot in (8, 4, 2, 1):
        p(f"v_add_f32_dpp v{T}, v{T}, v{T} row_ror:{rot} row_mask:0xf bank_mask:0xf")
    p(f"v_mul_f32 v{T}, 0xbfb8aa3b, v{T}")
    p(f"v_exp_f32 v{T}, v{T}")
    p(f"v_add_f32 v{T}, 1.0, v{T}")
    p(f"v_rcp_f32 v{T}, v{T}")
    p(f"v_lshlrev_b32 v{T+1}, 2, v{V_T+6}")
    p(f"v_and_b32 v{T+2}, 15, v{L}")
    p(f"v_cmp_eq_u32 vcc, 0, v{T+2}")
    p(f"v_cndmask_b32 v{T+1}, -1, v{T+1}, vcc")
    p(f"buffer_store_dword v{T}, v{T+1}, s[{gsrd}:{gsrd+3}], 0 offen sc1")

def h_epilogue(p, ch, n0_sgpr):
    L = V_LANE; T = V_T
    BF = 128
    for c in range(7):
        lo, hi = B1 + 2 * c, B1 + 2 * c + 1; r = BF + 4 * c
        p(f"v_lshlrev_b32 v{r}, 16, v{lo}"); p(f"v_and_b32 v{r+1}, 0xffff0000, v{lo}")
        p(f"v_lshlrev_b32 v{r+2}, 16, v{hi}"); p(f"v_and_b32 v{r+3}, 0xffff0000, v{hi}")
    p(f"s_lshl_b32 s{S_T0}, s{S_J}, 3")
    p(f"s_and_b32 s{S_T1}, s{S_W}, 1")
    p(f"s_lshl_b32 s{S_T1}, s{S_T1}, 2")
    p(f"s_add_u32 s{S_T0}, s{S_T0}, s{S_T1}")
    p(f"s_mul_i32 s{S_T0}, s{S_T0}, {KS_T * 1024}")
    p(f"s_lshl_b32 s{S_T1}, s{n0_sgpr}, 4")
    p(f"s_add_u32 s{S_T0}, s{S_T0}, s{S_T1}")
    p(f"v_lshlrev_b32 v{T}, 4, v{L}")
    p(f"v_add_u32 v{T}, s{S_T0}, v{T}")
    PK = 214
    for b in range(4):
        if b: p(f"v_add_u32 v{T}, {KS_T * 1024}, v{T}")
        p(f"v_add_u32 v{T+1}, 4096, v{T}")
        for c in range(7):
            a = ACC + 4 * (b * 7 + c); bf = BF + 4 * c
            for h in (0, 2): p(f"v_pk_add_f32 v[{a+h}:{a+h+1}], v[{a+h}:{a+h+1}], v[{bf+h}:{bf+h+1}]")
            for r in range(4): p(f"v_max_f32 v{a+r}, 0, v{a+r}")
            for h in (0, 2): p(f"v_pk_mul_f32 v[{a+h}:{a+h+1}], v[{a+h}:{a+h+1}], v[{a+h}:{a+h+1}]")
            cbl = 7 * ch + c
            half = cbl & 1; ks = cbl >> 1
            d = PK + 4 * ((b * 4 + (ks - (3 if ch else 0))) % 6) + 2 * half
            p(f"v_cvt_pk_bf16_f32 v{d}, v{a}, v{a+1}")
            p(f"v_cvt_pk_bf16_f32 v{d+1}, v{a+2}, v{a+3}")
            va = T + (ks >> 2); off = (ks & 3) * 1024
            single = (ch == 0 and c == 6) or (ch == 1 and c == 0)
            if single:
                p(f"buffer_store_dwordx2 v[{d}:{d+1}], v{va}, s[{S_AF}:{S_AF+3}], 0 offen offset:{off + 8 * half} sc1")
            elif half == 1:
                p(f"buffer_store_dwordx4 v[{d-2}:{d+1}], v{va}, s[{S_AF}:{S_AF+3}], 0 offen offset:{off} sc1")
```

```python
from fz_common import *

NSTEP, NH = 19, 14
S_AFD, S_WPD, S_GS, S_B2S = 16, 20, 24, 36
POLL_ISSUE, POLL_CHECK = 5, 9
V_POLL = 50

def acc(base, b, cb): return base + 4 * (b * 5 + cb)

def p2_addr_setup(p):
    L = V_LANE
    p(f"s_mul_i32 s{S_T0}, s{S_N2}, {KS_T * 5 * 1024}")
    p(f"s_mul_i32 s{S_T1}, s{S_W}, 5120")
    p(f"s_add_u32 s{S_T0}, s{S_T0}, s{S_T1}")
    p(f"v_lshlrev_b32 v{V_PW}, 4, v{L}")
    p(f"v_add_u32 v{V_PA}, 0, v{V_PW}")
    p(f"v_add_u32 v{V_PW}, s{S_T0}, v{V_PW}")
    p(f"v_add_u32 v{V_PW+1}, 4096, v{V_PW}")
    p(f"s_mul_i32 s{S_T0}, s{S_R2}, {4 * KS_T * 1024}")
    p(f"s_lshl_b32 s{S_T1}, s{S_W}, 10")
    p(f"s_add_u32 s{S_T0}, s{S_T0}, s{S_T1}")
    p(f"v_add_u32 v{V_PA}, s{S_T0}, v{V_PA}")
    for b in range(1, 4): p(f"v_add_u32 v{V_PA+b}, {b * KS_T * 1024}, v{V_PA}")

def step_ks(m): return 4 * m if m < NH else KS_H + 4 * (m - NH)

def w_loads(m):
    sr = S_WPD if m == NH - 1 else S_WP
    pre = f"s_mov_b32 s{S_SW}, {step_ks(m) * 5120}"
    ins = []
    for cb in range(5):
        r = A_WR + 20 * (m % NWR) + 4 * cb
        va, off = (V_PW, cb * 1024) if cb < 4 else (V_PW + 1, 0)
        o = f" offset:{off}" if off else ""
        ins.append(f"buffer_load_dwordx4 a[{r}:{r+3}], v{va}, s[{sr}:{sr+3}], s{S_SW} offen{o} sc1")
    return pre, ins

def a_loads(m):
    sr = S_AFD if m == NH - 1 else S_AF
    pre = f"s_mov_b32 s{S_SA}, {step_ks(m) * 1024}"
    ins = []
    for b in range(4):
        r = A_AR + 16 * (m % NAR) + 4 * b
        ins.append(f"buffer_load_dwordx4 a[{r}:{r+3}], v{V_PA+b}, s[{sr}:{sr+3}], s{S_SA} offen sc1")
    return pre, ins

def prefetch_list():
    out = []
    for m in range(NWR):
        pre, ins = w_loads(m)
        out.append([pre, ins[0]])
        out += [[x] for x in ins[1:]]
    return out

def p2_empty_srds(p):
    for dst, src, nb in ((S_AFD, S_AF, AF_BYTES), (S_WPD, S_WP, WP_BYTES)):
        p(f"s_mov_b32 s{dst}, s{src}"); p(f"s_mov_b32 s{dst+1}, s{src+1}")
        p(f"s_cmp_lt_u32 s{S_W}, 2")
        p(f"s_cselect_b32 s{dst+2}, {nb}, 0")
        p(f"s_mov_b32 s{dst+3}, 0x20000")

def p2_main(p):
    L = V_LANE
    vq = VmQ()
    p(f"v_and_b32 v2, 15, v{L}")
    p(f"s_lshl_b32 s{S_T0}, s{S_R2}, 8")
    p(f"v_lshl_add_u32 v2, v2, 2, s{S_T0}")
    p(f"v_lshrrev_b32 v3, 4, v{L}")
    p(f"s_mul_i32 s{S_T0}, s{S_N2}, 160")
    p(f"v_lshl_add_u32 v3, v3, 3, s{S_T0}")
    for m in range(NAR - 1):
        pre, ins = a_loads(m); p(pre)
        for x in ins: p(x); vq.issue(("A", m))
    for b in range(4):
        p(f"buffer_load_dword v{V_G+b}, v2, s[{S_GS}:{S_GS+3}], 0 offen offset:{64 * b} sc1"); vq.issue("G")
    for cb in range(5):
        p(f"buffer_load_dwordx2 v[{V_B2+2*cb}:{V_B2+2*cb+1}], v3, s[{S_B2S}:{S_B2S+3}], 0 offen offset:{32 * cb}"); vq.issue("B2")
    for r in range(ACCB, ACCA + 80, 2): p(f"v_mov_b64 v[{r}:{r+1}], 0")
    if "mid" not in EXP and "its" not in EXP: fstamp(p, 4)
    for m in range(NSTEP):
        base = ACCB if m < NH else ACCA
        need = [("A", m), ("W", m)]
        if m == POLL_CHECK: need.append("POLL")
        n = vq.count_for(need)
        if n is not None:
            p(f"s_waitcnt vmcnt({n})"); vq.retire(n)
        if m == POLL_CHECK:
            p(f"v_readfirstlane_b32 s{S_T0}, v{V_POLL}")
            p("s_nop 3")
            p(f"s_cmp_ge_u32 s{S_T0}, 8")
            p("s_cbranch_scc1 L_p2_o_ready")
            p(f"s_lshl_b32 s{S_T1}, s{S_R2}, 1")
            p(f"s_and_b32 s{S_T1}, s{S_T1}, 0xfffffffc")
            p(f"s_add_u32 s{S_T1}, s{S_T1}, {DBG_Q * 4}")
            poll_loop(p, f"s{S_T1}", 8, "L_p2_o_poll")
            p.label("L_p2_o_ready")
        if m == NH and "mid" not in EXP and "its" not in EXP: fstamp(p, 5)
        mf = []
        for cb in range(5):
            for b in range(4):
                a = acc(base, b, cb); w = A_WR + 20 * (m % NWR) + 4 * cb; x = A_AR + 16 * (m % NAR) + 4 * b
                mf.append(f"v_mfma_f32_16x16x32_bf16 v[{a}:{a+3}], a[{w}:{w+3}], a[{x}:{x+3}], v[{a}:{a+3}]")
        loads = []
        if m + NAR - 1 < NSTEP:
            pre, ins = a_loads(m + NAR - 1)
            loads += [(pre if k == 0 else None, x, ("A", m + NAR - 1)) for k, x in enumerate(ins)]
        if m >= 1 and m + NWR - 1 < NSTEP:
            pre, ins = w_loads(m + NWR - 1)
            loads += [(pre if k == 0 else None, x, ("W", m + NWR - 1)) for k, x in enumerate(ins)]
        if m == POLL_ISSUE:
            p(f"s_lshl_b32 s{S_T1}, s{S_R2}, 1")
            p(f"s_and_b32 s{S_T1}, s{S_T1}, 0xfffffffc")
            p(f"s_add_u32 s{S_T1}, s{S_T1}, {DBG_Q * 4}")
            p(f"v_mov_b32 v2, s{S_T1}")
            loads.append((None, f"global_load_dword v{V_POLL}, v2, s[{S_DBG}:{S_DBG+1}] sc1", "POLL"))
        gaps = [[] for _ in range(20)]
        for k, (pre, x, tag) in enumerate(loads):
            g = min(19, 1 + int(k * 18 / max(1, len(loads))))
            if pre: gaps[g - 1].append((pre, None))
            gaps[g].append((x, tag))
        extra = []
        if m == NH + 1:
            pass
        for k in range(20):
            p(mf[k])
            for x, tag in gaps[k]:
                p(x)
                if tag: vq.issue(tag)
    return vq

def p2_final(p):
    L = V_LANE; T = 52
    BF = 30
    p("s_waitcnt vmcnt(0)")
    for cb in range(5):
        lo, hi = V_B2 + 2 * cb, V_B2 + 2 * cb + 1; r = BF + 4 * cb
        p(f"v_lshlrev_b32 v{r}, 16, v{lo}"); p(f"v_and_b32 v{r+1}, 0xffff0000, v{lo}")
        p(f"v_lshlrev_b32 v{r+2}, 16, v{hi}"); p(f"v_and_b32 v{r+3}, 0xffff0000, v{hi}")
    for b in range(4):
        g = V_G + b
        p(f"v_sub_f32 v{T}, 1.0, v{g}")
        for cb in range(5):
            for h in (0, 2):
                A_ = acc(ACCA, b, cb) + h; B_ = acc(ACCB, b, cb) + h
                p(f"v_pk_mul_f32 v[{B_}:{B_+1}], v[{B_}:{B_+1}], v[{T}:{T+1}] op_sel_hi:[1,0]")
                if g % 2 == 0: p(f"v_pk_fma_f32 v[{A_}:{A_+1}], v[{A_}:{A_+1}], v[{g}:{g+1}], v[{B_}:{B_+1}] op_sel_hi:[1,0,1]")
                else: p(f"v_pk_fma_f32 v[{A_}:{A_+1}], v[{A_}:{A_+1}], v[{g-1}:{g}], v[{B_}:{B_+1}] op_sel:[0,1,0] op_sel_hi:[1,1,1]")
    p(f"v_lshlrev_b32 v{T+2}, 4, v{L}")
    p(f"s_mul_i32 s{S_T0}, s{S_W}, 5120")
    p(f"v_add_u32 v{T+2}, s{S_T0}, v{T+2}")
    p(f"v_add_u32 v{T+3}, 40960, v{T+2}")
    for w in range(4):
        p(f"s_cmp_lg_u32 s{S_W}, {w}")
        p(f"s_cbranch_scc1 L_p2_red_skip{w}")
        for k in range(1, 4):
            d = (w + k) & 3
            for cb in range(5):
                a = acc(ACCA, d, cb)
                p(f"ds_write_b128 v{T+2+(d>>1)}, v[{a}:{a+3}] offset:{(d & 1) * 20480 + cb * 1024}")
        for cb in range(5):
            a = acc(ACCA, w, cb); bd = acc(ACCB, 0, cb)
            p(f"v_mov_b64 v[{bd}:{bd+1}], v[{a}:{a+1}]")
            p(f"v_mov_b64 v[{bd+2}:{bd+3}], v[{a+2}:{a+3}]")
        p(f"v_mov_b32 v{T}, v{V_G+w}")
        p.label(f"L_p2_red_skip{w}")
    p(f"v_sub_f32 v{T}, 1.0, v{T}")
    for cb in range(5):
        r = BF + 4 * cb; o = acc(ACCB, 0, cb)
        for h in (0, 2):
            p(f"v_pk_fma_f32 v[{o+h}:{o+h+1}], v[{r+h}:{r+h+1}], v[{T}:{T+1}], v[{o+h}:{o+h+1}] op_sel_hi:[1,0,1]")
    p("s_waitcnt lgkmcnt(0)")
    p("s_barrier")
    p(f"v_lshlrev_b32 v{T+2}, 4, v{L}")
    p(f"s_mul_i32 s{S_T0}, s{S_W}, 20480")
    p(f"v_add_u32 v{T+2}, s{S_T0}, v{T+2}")
    for k in range(1, 4):
        p(f"s_add_u32 s{S_T1}, s{S_W}, {k}")
        p(f"s_and_b32 s{S_T1}, s{S_T1}, 3")
        p(f"s_mul_i32 s{S_T1}, s{S_T1}, 5120")
        p(f"v_add_u32 v{T+3+k}, s{S_T1}, v{T+2}")
        for cb in range(5):
            r = ACCA + 4 * ((k - 1) * 5 + cb)
            p(f"ds_read_b128 v[{r}:{r+3}], v{T+3+k} offset:{cb * 1024}")
    for k in range(1, 4):
        p(f"s_waitcnt lgkmcnt({5 * (3 - k)})")
        for cb in range(5):
            r = ACCA + 4 * ((k - 1) * 5 + cb); o = acc(ACCB, 0, cb)
            for h in (0, 2): p(f"v_pk_add_f32 v[{o+h}:{o+h+1}], v[{o+h}:{o+h+1}], v[{r+h}:{r+h+1}]")
    TR = 81920
    p(f"v_and_b32 v{T}, 15, v{L}")
    p(f"v_mul_u32_u24 v{T}, 176, v{T}")
    p(f"v_lshrrev_b32 v{T+1}, 4, v{L}")
    p(f"v_lshl_add_u32 v{T}, v{T+1}, 3, v{T}")
    p(f"s_mul_i32 s{S_T0}, s{S_W}, 2816")
    p(f"s_add_u32 s{S_T0}, s{S_T0}, {TR}")
    p(f"v_add_u32 v{T}, s{S_T0}, v{T}")
    for cb in range(5):
        o = acc(ACCB, 0, cb); r = BF + 2 * cb
        p(f"v_cvt_pk_bf16_f32 v{r}, v{o}, v{o+1}")
        p(f"v_cvt_pk_bf16_f32 v{r+1}, v{o+2}, v{o+3}")
        p(f"ds_write_b64 v{T}, v[{r}:{r+1}] offset:{32 * cb}")
    p(f"s_lshl_b32 s{S_T1}, s{S_R2}, 6")
    p(f"s_lshl_b32 s{S_SA}, s{S_W}, 4")
    p(f"s_add_u32 s{S_T1}, s{S_T1}, s{S_SA}")
    p(f"s_mul_i32 s{S_T1}, s{S_T1}, 1280")
    p(f"s_mul_i32 s{S_SA}, s{S_N2}, 160")
    p(f"s_add_u32 s{S_T1}, s{S_T1}, s{S_SA}")
    for j in range(3):
        p(f"v_add_u32 v{T+2}, {64 * j}, v{L}")
        div_const(p, T + 3, T + 2, 10, 191)
        p(f"v_mul_u32_u24 v{T+4}, 10, v{T+3}")
        p(f"v_sub_u32 v{T+4}, v{T+2}, v{T+4}")
        p(f"v_mul_u32_u24 v{T+5}, 176, v{T+3}")
        p(f"v_lshl_add_u32 v{T+5}, v{T+4}, 4, v{T+5}")
        p(f"v_add_u32 v{T+5}, s{S_T0}, v{T+5}")
        p(f"v_mul_u32_u24 v{T+3}, 1280, v{T+3}")
        p(f"v_lshl_add_u32 v{T+3}, v{T+4}, 4, v{T+3}")
        p(f"v_add_u32 v{T+6+j}, s{S_T1}, v{T+3}")
        if j == 2:
            p(f"v_cmp_gt_u32 vcc, 160, v{T+2}")
            p(f"v_cndmask_b32 v{T+6+j}, -1, v{T+6+j}, vcc")
            p(f"v_cndmask_b32 v{T+5}, 0, v{T+5}, vcc")
        p("s_waitcnt lgkmcnt(0)")
        r = ACCA + 4 * j
        p(f"ds_read_b128 v[{r}:{r+3}], v{T+5}")
    p("s_waitcnt lgkmcnt(0)")
    for j in range(3):
        r = ACCA + 4 * j
        p(f"buffer_store_dwordx4 v[{r}:{r+3}], v{T+6+j}, s[{S_OUT}:{S_OUT+3}], 0 offen")
```

```python
from fz_common import *
import struct, math

QP = 480
XOFF = 64 * QP
STG = XOFF + 144 * 128

def q_cols(ch): return list(range(0, 8)) if ch == 0 else list(range(8, 15))
def q_halo(rh, ch): return {(0, 0): [5, 6], (1, 0): [7], (0, 1): [8, 9, 10, 11], (1, 1): [12, 13, 14]}[(rh, ch)]
def q_acc(ch, b, cb): return ACC + 4 * (b * 8 + q_cols(ch).index(cb))
def q_acc_halo(k): return ACC + 128 + 4 * k

def q_dmas():
    def W(q): return (f"s_add_u32 m0, s{S_DM}, {q * 4096}", f"buffer_load_dwordx4 v{V_DMA+q}, s[{S_WT}:{S_WT+3}], s{S_KW} offen lds")
    def X(q): return (f"s_add_u32 m0, s{S_DM}, {XOFF + q * 4096}", f"buffer_load_dwordx4 v{V_DMA+8+q}, s[{S_X}:{S_X+3}], s{S_KX} offen lds")
    FX = (f"s_add_u32 m0, s{S_DM}, s{S_FD}", f"buffer_load_dwordx4 v{V_DMA+7}, s[{S_FX}:{S_FX+3}], s{S_KF} offen lds")
    return [W(0), W(1), X(0), W(2), X(1), W(3)], [W(4), W(5), X(2), W(6), FX, X(3)]

def stage_offsets(kwstep, flex):
    out = [f"s_mul_i32 s{S_KW}, s{S_T0}, {kwstep}", f"s_lshl_b32 s{S_KX}, s{S_T0}, 7"]
    if flex: out.append(f"s_mul_i32 s{S_KF}, s{S_T0}, s{S_FSTEP}")
    return out

def stage_advance(stg, kwstep, flex):
    return [f"s_add_u32 s{S_DM}, s{S_RD}, s{S_WOFS}", f"s_add_u32 s{S_T0}, s{S_CNT}, {RING}",
            f"s_xor_b32 s{S_T0}, s{S_T0}, s{S_PAR}"] + stage_offsets(kwstep, flex)

def prologue_stage(k, stg, kwstep, flex):
    out = [f"s_xor_b32 s{S_T0}, s{S_PAR}, {k}"] + stage_offsets(kwstep, flex)
    if k: out.append(f"s_add_u32 s{S_DM}, s{S_WOFS}, {k * stg}")
    else: out.append(f"s_mov_b32 s{S_DM}, s{S_WOFS}")
    return out

def read_advance(stg, nw):
    out = [("s", f"s_add_u32 s{S_RD}, s{S_RD}, {stg}"), ("s", f"s_cmp_eq_u32 s{S_RD}, {RING * stg}"),
           ("s", f"s_cselect_b32 s{S_RD}, 0, s{S_RD}")]
    return out + addr_update(nw)

def addr_update(nw):
    out = [("a", f"v_add_u32 v{V_XA0}, s{S_RD}, v{V_XB0}"), ("a", f"v_add_u32 v{V_WA0}, s{S_RD}, v{V_WB0}")]
    if nw == 2: out.append(("a", f"v_add_u32 v{V_WA1}, s{S_RD}, v{V_WB1}"))
    out.append(("a", f"v_add_u32 v{V_XA1}, s{S_RD}, v{V_XB1}"))
    return out

def tail_sizes(flex):
    out = [("s", f"s_cmp_lt_u32 s{S_CNT}, {NSTG - RING}"), ("s", f"s_cselect_b32 s{S_WT+2}, s{S_WSZ}, 0"),
           ("s", f"s_cselect_b32 s{S_X+2}, s{S_XSZ}, 0")]
    if flex: out.append(("s", f"s_cselect_b32 s{S_FX+2}, s{S_FSZ}, 0"))
    return out

def q_reads(rh, ch, half, par):
    xa = V_XA0 if half == 0 else V_XA1
    hv = []
    xs = [f"ds_read_b128 a[{A_X+20*par+4*b}:{A_X+20*par+4*b+3}], v{xa} offset:{(1 + 4 * rh + b) * 2048}" for b in range(4)]
    xs.append(f"ds_read_b128 a[{A_X+20*par+16}:{A_X+20*par+19}], v{xa}")
    ws = []
    for k, cb in enumerate(q_cols(ch)):
        r = A_WF + 32 * par + 4 * k
        ws.append(f"ds_read_b64_tr_b16 a[{r}:{r+1}], v{V_WA0} offset:{32 * half * QP + cb * 32}")
        ws.append(f"ds_read_b64_tr_b16 a[{r+2}:{r+3}], v{V_WA0} offset:{(32 * half + 8) * QP + cb * 32}")
    return ws[:2] + xs + ws[2:]

def q_mfmas(rh, ch, par):
    out = []; cols = q_cols(ch); halo = q_halo(rh, ch)
    def one(a, cb, x):
        w = A_WF + 32 * par + 4 * cols.index(cb)
        if cb < 10: return f"v_mfma_f32_16x16x32_bf16 v[{a}:{a+3}], a[{w}:{w+3}], a[{x}:{x+3}], v[{a}:{a+3}]"
        return f"v_mfma_f32_16x16x32_bf16 v[{a}:{a+3}], a[{x}:{x+3}], a[{w}:{w+3}], v[{a}:{a+3}]"
    for cb in cols:
        for b in range(4): out.append(one(q_acc(ch, b, cb), cb, A_X + 20 * par + 4 * b))
        if cb in halo: out.append(one(q_acc_halo(halo.index(cb)), cb, A_X + 20 * par + 16))
    return out

def gen_loop(p, label, nd_stage, mf, reads, dmas, stg, kwstep, flex, nw, hook=None):
    first, second = dmas
    if "nodma" in EXP: first, second = [], []
    if "now" in EXP:
        first = [x for x in first if f"s[{S_WT}:" not in x[1]]; second = [x for x in second if f"s[{S_WT}:" not in x[1]]
    if "nox" in EXP:
        first = [x for x in first if f"s[{S_X}:" not in x[1]]; second = [x for x in second if f"s[{S_X}:" not in x[1]]
    if "noread" in EXP: reads = lambda a, b: []
    if "nomfma" in EXP:
        mf0 = mf
        mf = lambda par: ["s_nop 0" for _ in mf0(par)]
    if "nodma" in EXP or "now" in EXP or "nox" in EXP: nd_stage = len(first) + len(second)
    p.label(label)
    p("s_waitcnt lgkmcnt(0)")
    post = [("s", t) for t in stage_advance(stg, kwstep, flex)] + tail_sizes(flex) + read_advance(stg, nw)
    S = schedule_step(mf(0), reads(1, 1), second, [], post)
    S.emit(p)
    if "nowait" in EXP: p("s_waitcnt vmcnt(50) lgkmcnt(0)")
    else: p(f"s_waitcnt vmcnt({nd_stage}) lgkmcnt(0)")
    if "nobar" not in EXP: p("s_barrier")
    if hook: hook(p)
    if "its" in EXP:
        for k, (it, st) in enumerate(((1, 1), (4, 2), (7, 4), (8, 5), (9, 6))):
            p(f"s_cmp_lg_u32 s{S_CNT}, {it}")
            p(f"s_cbranch_scc1 {label}_st{k}")
            fstamp(p, st)
            p.label(f"{label}_st{k}")
    post = [("s", f"s_add_u32 s{S_CNT}, s{S_CNT}, 1"), ("s", f"s_cmp_lt_u32 s{S_CNT}, {NSTG}")]
    S = schedule_step(mf(1), reads(0, 0), first, [], post)
    S.emit(p)
    p(f"s_cbranch_scc1 {label}")

def ex_off(m, B, c): return ((m * 9 + B) * 5 + c) * 512
QR, KR, VR = 160, 180, 210
def qreg(bb, c): return QR + 10 * bb + 2 * c
def kreg(B, c): return KR + 10 * B + 2 * c
def vreg(c, B): return VR + 6 * c + 2 * B
V_SEL = 4
V_EX, V_EX0 = 8, 9
V_ST = 10
V_NEG = 12

def pack(p, d, a):
    p(f"v_cvt_pk_bf16_f32 v{d}, v{a}, v{a+1}")
    p(f"v_cvt_pk_bf16_f32 v{d+1}, v{a+2}, v{a+3}")

def q_export_halo(p, rh, ch):
    for k, cb in enumerate(q_halo(rh, ch)):
        m, c = (1, cb - 5) if cb < 10 else (2, cb - 10)
        d = V_T + 2 * k
        pack(p, d, q_acc_halo(k))
        p(f"ds_write_b64 v{V_EX0}, v[{d}:{d+1}] offset:{ex_off(m, 0, c)}")

def q_exchange(p, ch):
    tmp = [V_T, V_T + 2, V_T + 4, V_T + 6]; ti = 0
    def exp(m, b, c, src): p(f"ds_write_b64 v{V_EX}, v[{src}:{src+1}] offset:{ex_off(m, 1 + b, c)}")
    if ch == 0:
        for b in (2, 3):
            for c in range(5):
                d = tmp[ti % 4]; ti += 1
                pack(p, d, q_acc(0, b, c)); exp(0, b, c, d)
        for b in (1, 2, 3):
            for c in range(3):
                d = kreg(b + 1, c) if b == 1 else tmp[ti % 4]; ti += 1
                pack(p, d, q_acc(0, b, 5 + c)); exp(1, b, c, d)
        p("s_waitcnt lgkmcnt(0)"); p("s_barrier")
        for c in range(3): p(f"ds_read_b64 v[{kreg(0,c)}:{kreg(0,c)+1}], v{V_EX} offset:{ex_off(1, 0, c)}")
        for B in range(3):
            for c in (3, 4): p(f"ds_read_b64 v[{kreg(B,c)}:{kreg(B,c)+1}], v{V_EX} offset:{ex_off(1, B, c)}")
        for c in range(5):
            for B in range(3): p(f"ds_read_b64 v[{vreg(c,B)}:{vreg(c,B)+1}], v{V_EX} offset:{ex_off(2, B, c)}")
        for c in range(3): pack(p, kreg(1, c), q_acc(0, 0, 5 + c))
        for b in (0, 1):
            for c in range(5): pack(p, qreg(b, c), q_acc(0, b, c))
    else:
        for b in (0, 1, 3):
            for c in (3, 4):
                d = kreg(b - 1, c) if b >= 1 else tmp[ti % 4]; ti += 1
                pack(p, d, q_acc(1, b, 5 + c)); exp(1, b, c, d)
            for c in range(5):
                d = vreg(c, b - 1) if b >= 1 else tmp[ti % 4]; ti += 1
                pack(p, d, q_acc(1, b, 10 + c)); exp(2, b, c, d)
        p("s_waitcnt lgkmcnt(0)"); p("s_barrier")
        for bb in range(2):
            for c in range(5): p(f"ds_read_b64 v[{qreg(bb,c)}:{qreg(bb,c)+1}], v{V_EX} offset:{ex_off(0, 3 + bb, c)}")
        for B in range(3):
            for c in range(3): p(f"ds_read_b64 v[{kreg(B,c)}:{kreg(B,c)+1}], v{V_EX} offset:{ex_off(1, 2 + B, c)}")
        for c in (3, 4): pack(p, kreg(1, c), q_acc(1, 2, 5 + c))
        for c in range(5): pack(p, vreg(c, 1), q_acc(1, 2, 10 + c))

M_ODD, M_G0, M_GE1, M_LE1, M_GE2, M_LE2, M_G3, M_CUR0, M_CUR1, M_NEG0, M_NEG1 = [S_MASK + 2 * k for k in range(11)]
def sp(x): return f"s[{x}:{x+1}]"
CEXP = struct.unpack("<I", struct.pack("<f", (DH ** -0.5) * math.log2(math.e)))[0]

def att_setup_scalar(p):
    L = V_LANE; T = V_T
    def m64(dst, hi, lo):
        p(f"s_mov_b32 s{dst}, {lo:#x}"); p(f"s_mov_b32 s{dst+1}, {hi:#x}")
    m64(M_ODD, 0xAAAAAAAA, 0xAAAAAAAA); m64(M_G0, 0, 0xFFFF); m64(M_GE1, 0xFFFFFFFF, 0xFFFF0000)
    m64(M_LE1, 0, 0xFFFFFFFF); m64(M_GE2, 0xFFFFFFFF, 0); m64(M_LE2, 0xFFFF, 0xFFFFFFFF); m64(M_G3, 0xFFFF0000, 0)
    p(f"v_and_b32 v{T}, 15, v{L}")
    p(f"v_and_b32 v{T+1}, 1, v{L}")
    p(f"v_lshrrev_b32 v{T+2}, 4, v{L}")
    p(f"v_lshl_add_u32 v{T+2}, v{T+2}, 2, v{T+1}")
    p(f"v_cmp_le_u32 {sp(M_CUR0)}, v{T+2}, v{T}")
    p(f"v_add_u32 v{T+2}, 2, v{T+2}")
    p(f"v_cmp_le_u32 {sp(M_CUR1)}, v{T+2}, v{T}")
    p(f"s_or_b32 s{S_T0}, s{S_J}, s{S_W}")
    p(f"s_cmp_eq_u32 s{S_T0}, 0")
    p(f"s_cselect_b64 {sp(M_NEG0)}, -1, 0")
    p(f"s_cselect_b64 {sp(M_NEG1)}, -1, 0")
    p(f"s_andn2_b64 {sp(M_NEG0)}, {sp(M_NEG0)}, {sp(M_CUR0)}")
    p(f"s_andn2_b64 {sp(M_NEG1)}, {sp(M_NEG1)}, {sp(M_CUR1)}")
    for c in range(5):
        p(f"s_mul_i32 s{S_T0}, s{S_I}, 5")
        p(f"s_add_u32 s{S_T0}, s{S_T0}, {c}")
        p(f"s_lshr_b32 s{S_T1}, s{S_T0}, 1")
        p(f"s_add_u32 s{S_T1}, s{S_T1}, {KS_H}")
        p(f"s_lshl_b32 s{S_T1}, s{S_T1}, 10")
        p(f"s_and_b32 s{S_T0}, s{S_T0}, 1")
        p(f"s_lshl_b32 s{S_T0}, s{S_T0}, 3")
        p(f"s_add_u32 s{S_SO+c}, s{S_T1}, s{S_T0}")

def att_setup_vector(p):
    L = V_LANE; T = V_T
    p(f"v_mov_b32 v{T+3}, 0x0c0c0100"); p(f"v_mov_b32 v{T+4}, 0x01000c0c")
    p(f"v_cndmask_b32 v{T+3}, v{T+3}, v{T+4}, {sp(M_ODD)}")
    p(f"v_mov_b32 v{T+5}, 0x0c0c0302"); p(f"v_mov_b32 v{T+4}, 0x03020c0c")
    p(f"v_cndmask_b32 v{T+5}, v{T+5}, v{T+4}, {sp(M_ODD)}")
    p(f"v_mov_b32 v{T+4}, 0x0c0c0c0c")
    p(f"v_cndmask_b32 v{V_SEL+0}, v{T+3}, v{T+4}, {sp(M_CUR0)}")
    p(f"v_cndmask_b32 v{V_SEL+2}, v{T+4}, v{T+3}, {sp(M_CUR0)}")
    p(f"v_cndmask_b32 v{V_SEL+1}, v{T+5}, v{T+4}, {sp(M_CUR1)}")
    p(f"v_cndmask_b32 v{V_SEL+3}, v{T+4}, v{T+5}, {sp(M_CUR1)}")
    p(f"s_lshl_b32 s{S_T0}, s{S_J}, 3")
    p(f"s_lshl_b32 s{S_T1}, s{S_W}, 1")
    p(f"s_add_u32 s{S_T0}, s{S_T0}, s{S_T1}")
    p(f"s_mul_i32 s{S_T0}, s{S_T0}, {KS_T * 1024}")
    p(f"v_lshlrev_b32 v{V_ST}, 4, v{L}")
    p(f"v_add_u32 v{V_ST}, s{S_T0}, v{V_ST}")
    p(f"v_add_u32 v{V_ST+1}, {KS_T * 1024}, v{V_ST}")
    p(f"v_mov_b32 v{V_NEG}, 0xf149f2ca")
    p(f"s_mov_b32 s{S_T2}, {CEXP:#x}")

def cross4x2(p, A_, B_, op):
    seqs = []
    for a, b, c, d in (A_, B_):
        seqs.append([f"v_permlane32_swap_b32 v{a}, v{b}", f"v_permlane32_swap_b32 v{c}, v{d}",
                     f"{op} v{a}, v{a}, v{b}", f"{op} v{c}, v{c}, v{d}",
                     f"v_permlane16_swap_b32 v{a}, v{c}", f"{op} v{a}, v{a}, v{c}",
                     f"v_mov_b32 v{c}, v{a}", f"v_permlane16_swap_b32 v{a}, v{c}",
                     f"v_mov_b32 v{b}, v{a}", f"v_mov_b32 v{d}, v{c}",
                     f"v_permlane32_swap_b32 v{a}, v{b}", f"v_permlane32_swap_b32 v{c}, v{d}"])
    for x, y in zip(*seqs):
        p(x); p(y)

def attention(p):
    QX, SR, BR, MXR, SMR = 16, 48, 112, 128, 136
    PR, OR, PK = 16, 48, 112
    qmask = {0: [None, M_G0], 1: [M_GE1, M_LE1], 2: [M_GE2, M_LE2], 3: [M_G3, None]}
    U = [(bb, h) for bb in range(2) for h in range(4)]
    p("s_waitcnt lgkmcnt(0)")
    for u, (bb, h) in enumerate(U):
        for half in range(2):
            mk = qmask[h][half]
            for r in range(2):
                src = qreg(bb, h + half) + r; dst = QX + 4 * u + 2 * half + r
                if mk is None: p(f"v_mov_b32 v{dst}, v{src}")
                else: p(f"v_cndmask_b32 v{dst}, 0, v{src}, {sp(mk)}")
    for u, (bb, h) in enumerate(U):
        for pc in range(2):
            s = SR + 8 * u + 4 * pc; k = kreg(bb + pc, h)
            p(f"v_mfma_f32_16x16x32_bf16 v[{s}:{s+3}], v[{k}:{k+3}], v[{QX+4*u}:{QX+4*u+3}], 0")
    for u, (bb, h) in enumerate(U):
        s = SR + 8 * u; b0 = BR + 2 * u
        p(f"v_cndmask_b32 v{s}, v{s}, v{s+1}, {sp(M_ODD)}")
        p(f"v_cndmask_b32 v{s+2}, v{s+2}, v{s+3}, {sp(M_ODD)}")
        p(f"v_cndmask_b32 v{s+4}, v{s+4}, v{s+5}, {sp(M_ODD)}")
        p(f"v_cndmask_b32 v{s+6}, v{s+6}, v{s+7}, {sp(M_ODD)}")
        p(f"v_cndmask_b32 v{b0}, v{s}, v{s+4}, {sp(M_CUR0)}")
        p(f"v_cndmask_b32 v{b0+1}, v{s+2}, v{s+6}, {sp(M_CUR1)}")
        if bb == 0:
            p(f"v_cndmask_b32 v{b0}, v{b0}, v{V_NEG}, {sp(M_NEG0)}")
            p(f"v_cndmask_b32 v{b0+1}, v{b0+1}, v{V_NEG}, {sp(M_NEG1)}")
        p(f"v_max_f32 v{MXR+u}, v{b0}, v{b0+1}")
    cross4x2(p, [MXR + k for k in range(4)], [MXR + 4 + k for k in range(4)], "v_max_f32")
    for u in range(8):
        b0 = BR + 2 * u
        p(f"v_mul_f32 v{MXR+u}, s{S_T2}, v{MXR+u}")
        p(f"v_fma_f32 v{b0}, v{b0}, s{S_T2}, -v{MXR+u}")
        p(f"v_fma_f32 v{b0+1}, v{b0+1}, s{S_T2}, -v{MXR+u}")
    for u in range(8):
        b0 = BR + 2 * u
        p(f"v_exp_f32 v{b0}, v{b0}")
        p(f"v_exp_f32 v{b0+1}, v{b0+1}")
    for u in range(8): p(f"v_add_f32 v{SMR+u}, v{BR+2*u}, v{BR+2*u+1}")
    cross4x2(p, [SMR + k for k in range(4)], [SMR + 4 + k for k in range(4)], "v_add_f32")
    for u in range(8): p(f"v_rcp_f32 v{SMR+u}, v{SMR+u}")
    for u in range(8):
        b0 = BR + 2 * u
        p(f"v_mul_f32 v{b0}, v{b0}, v{SMR+u}")
        p(f"v_mul_f32 v{b0+1}, v{b0+1}, v{SMR+u}")
        p(f"v_cvt_pk_bf16_f32 v{MXR+u}, v{b0}, v{b0+1}")
    for u in range(8):
        for r in range(4): p(f"v_perm_b32 v{PR+4*u+r}, v{MXR+u}, v{MXR+u}, v{V_SEL+r}")
    pairs = [(0, 0), (1, 0), (1, 1), (2, 1), (2, 2), (3, 2), (3, 3), (4, 3)]
    for bb in range(2):
        for k, (c, h) in enumerate(pairs):
            o = OR + 4 * (8 * bb + k); v = vreg(c, bb); pr = PR + 4 * (4 * bb + h)
            p(f"v_mfma_f32_16x16x32_bf16 v[{o}:{o+3}], v[{v}:{v+3}], v[{pr}:{pr+3}], 0")
    sel = {1: M_GE1, 2: M_GE2, 3: M_G3}
    for bb in range(2):
        for c in range(5):
            ks = [k for k, (cc, h) in enumerate(pairs) if cc == c]
            d = PK + 2 * (5 * bb + c)
            pack(p, d, OR + 4 * (8 * bb + ks[0]))
            if len(ks) == 2:
                e = PK + 20 + 2 * (c & 1)
                pack(p, e, OR + 4 * (8 * bb + ks[1]))
                p(f"v_cndmask_b32 v{d}, v{d}, v{e}, {sp(sel[c])}")
                p(f"v_cndmask_b32 v{d+1}, v{d+1}, v{e+1}, {sp(sel[c])}")
            p(f"buffer_store_dwordx2 v[{d}:{d+1}], v{V_ST+bb}, s[{S_AF}:{S_AF+3}], s{S_SO+c} offen sc1")

def lane_bases(p, T, wpitch, xoff):
    L = V_LANE
    p(f"v_and_b32 v{T}, 15, v{L}")
    p(f"v_lshrrev_b32 v{T+1}, 4, v{L}")
    p(f"v_lshrrev_b32 v{T+2}, 1, v{T}")
    p(f"v_xor_b32 v{T+2}, v{T+2}, v{T+1}")
    p(f"v_lshlrev_b32 v{T+2}, 4, v{T+2}")
    p(f"v_lshl_add_u32 v{V_XB0}, v{T}, 7, v{T+2}")
    p(f"v_add_u32 v{V_XB0}, {xoff}, v{V_XB0}")
    p(f"v_xor_b32 v{V_XB1}, 64, v{V_XB0}")
    p(f"v_lshrrev_b32 v{T+3}, 1, v{T+1}")
    p(f"v_lshlrev_b32 v{T+3}, 4, v{T+3}")
    p(f"v_and_b32 v{T+1}, 1, v{T+1}")
    p(f"v_lshl_add_u32 v{T+3}, v{T+1}, 2, v{T+3}")
    p(f"v_lshrrev_b32 v{T+2}, 2, v{T}")
    p(f"v_add_u32 v{T+3}, v{T+3}, v{T+2}")
    p(f"v_mul_u32_u24 v{T+3}, {wpitch}, v{T+3}")
    p(f"v_and_b32 v{T}, 3, v{L}")
    p(f"v_lshl_add_u32 v{V_WB0}, v{T}, 3, v{T+3}")

def x_dma_lane(p, dst, T, row0_sgpr):
    L = V_LANE
    p(f"s_and_b32 s{S_T3}, s{S_W}, 1")
    p(f"s_lshl_b32 s{S_T3}, s{S_T3}, 2")
    p(f"v_lshrrev_b32 v{T}, 4, v{L}")
    p(f"v_add_u32 v{T}, s{S_T3}, v{T}")
    p(f"v_xor_b32 v{T}, v{T}, v{L}")
    p(f"v_and_b32 v{T}, 7, v{T}")
    p(f"v_lshrrev_b32 v{T+1}, 3, v{L}")
    p(f"v_mul_u32_u24 v{T+1}, 1280, v{T+1}")
    p(f"v_lshl_add_u32 v{T+1}, v{T}, 4, v{T+1}")
    p(f"v_add_u32 v{dst}, s{row0_sgpr}, v{T+1}")

def q_dma_setup(p):
    L = V_LANE; T = ACC
    p(f"s_mul_i32 s{S_T2}, s{S_I}, 160")
    p(f"s_lshl_b32 s{S_T0}, s{S_W}, 6")
    p(f"v_add_u32 v{T+8}, s{S_T0}, v{L}")
    for q in range(8):
        if q: p(f"v_add_u32 v{T+8}, 256, v{T+8}")
        div_const(p, T + 1, T + 8, 30, 2111)
        p(f"v_mul_u32_u24 v{T+2}, 30, v{T+1}")
        p(f"v_sub_u32 v{T+2}, v{T+8}, v{T+2}")
        div_const(p, T + 3, T + 2, 10, 29)
        p(f"v_mul_u32_u24 v{T+4}, 1120, v{T+3}")
        p(f"v_lshl_add_u32 v{T+2}, v{T+2}, 4, v{T+4}")
        swap23(p, T + 3, T + 1, T + 4, 0x73)
        p(f"v_mul_u32_u24 v{T+3}, {3 * D * 2}, v{T+3}")
        p(f"v_add3_u32 v{V_DMA+q}, v{T+3}, v{T+2}, s{S_T2}")
    p(f"s_lshl_b32 s{S_T0}, s{S_J}, 7")
    p(f"s_lshl_b32 s{S_T1}, s{S_W}, 3")
    p(f"s_add_u32 s{S_T0}, s{S_T0}, s{S_T1}")
    p(f"s_sub_u32 s{S_T0}, s{S_T0}, 16")
    p(f"s_mul_i32 s{S_T0}, s{S_T0}, 1280")
    x_dma_lane(p, V_DMA + 8, T, S_T0)
    for q in range(1, 4): p(f"v_add_u32 v{V_DMA+8+q}, {q * 32 * 1280}, v{V_DMA+8}")
```

```python
import sys
sys.path.insert(0, "gen")
from fz_common import *
import fz_q as Q, fz_h as Hh, fz_p2 as P2
import common

NAME = "gated_mix__sliding_local_dilated__dense_activation_squared_relu__prompt"
LDS_BYTES = 163840

class Sprinkle:
    def __init__(self, p, groups, every):
        self.p, self.q, self.every, self.n = p, list(groups), every, 0
    def __call__(self, text):
        self.p(text); self.n += 1
        if self.q and self.n % self.every == 0:
            for x in self.q.pop(0): self.p(x)
    def label(self, name): self.p.label(name)
    def flush(self):
        while self.q:
            for x in self.q.pop(0): self.p(x)

def phase2_entry_common(p, tag):
    p(f"s_load_dwordx2 s[{P2.S_B2S}:{P2.S_B2S+1}], s[0:1], {KA_B2}")
    P2.p2_addr_setup(p)
    P2.p2_empty_srds(p)
    p(f"s_add_u32 s{P2.S_GS}, s{S_AF}, {G_OFF}")
    p(f"s_addc_u32 s{P2.S_GS+1}, s{S_AF+1}, 0")
    p(f"s_mov_b32 s{P2.S_GS+2}, {G_BYTES}")
    p(f"s_mov_b32 s{P2.S_GS+3}, 0x20000")
    wait_counter(p, DBG_WP * 4, 128, f"L_wp_poll{tag}")
    p("s_waitcnt lgkmcnt(0)")
    p(f"s_and_b32 s{P2.S_B2S+1}, s{P2.S_B2S+1}, 0xffff")
    p(f"s_mov_b32 s{P2.S_B2S+2}, {D * 2}")
    p(f"s_mov_b32 s{P2.S_B2S+3}, 0x20000")

def gen_role_q(p):
    L = V_LANE
    p.label("L_role_q")
    if "noq" in EXP: p("s_endpgm")
    Q.lane_bases(p, ACC, Q.QP, Q.XOFF)
    Q.q_dma_setup(p)
    p("s_waitcnt lgkmcnt(0)")
    build_srd(p, S_X, P_AX, S * D * 2)
    build_srd(p, S_WT, P_WQKV, D * 3 * D * 2)
    p(f"s_mov_b32 s{S_XSZ}, {S * D * 2}")
    p(f"s_mov_b32 s{S_WSZ}, {D * 3 * D * 2}")
    p(f"s_mov_b32 s{S_T0}, {28 * 1024}")
    p(f"s_mov_b32 s{S_T1}, {64 * 3 * D * 2}")
    p(f"s_cmp_ge_u32 s{S_W}, 2")
    p(f"s_cselect_b32 s{S_FX}, s{S_X}, s{S_WT}")
    p(f"s_cselect_b32 s{S_FX+1}, s{S_X+1}, s{S_WT+1}")
    p(f"s_cselect_b32 s{S_FX+2}, s{S_X+2}, s{S_WT+2}")
    p(f"s_mov_b32 s{S_FX+3}, 0x20000")
    p(f"s_cselect_b32 s{S_FSZ}, s{S_XSZ}, s{S_WSZ}")
    p(f"s_cselect_b32 s{S_FSTEP}, 128, s{S_T1}")
    p(f"s_cselect_b32 s{S_FD}, {Q.XOFF + 14 * 1024}, s{S_T0}")
    p("s_cselect_b64 vcc, -1, 0")
    p(f"v_add_u32 v{ACC}, {112 * 1280}, v{V_DMA+8}")
    p(f"v_cndmask_b32 v{V_DMA+7}, v{V_DMA+7}, v{ACC}, vcc")
    p(f"s_lshl_b32 s{S_WOFS}, s{S_W}, 10")
    for r in (S_RD, S_CNT): p(f"s_mov_b32 s{r}, 0")
    p(f"s_and_b32 s{S_PAR}, s{S_J}, {0 if 'nopar' in EXP else 1}")
    first, second = Q.q_dmas()
    for st in range(3):
        for t in Q.prologue_stage(st, Q.STG, 64 * 3 * D * 2, True): p(t)
        for m0, d in (first + second if st < 2 else first): p(m0); p(d)
    if "mid" not in EXP and "its" not in EXP: fstamp(p, 1)
    build_srd(p, S_AF, P_WS, AF_BYTES)
    build_srd(p, S_WP, P_WS, WP_BYTES, add=WP_OFF)
    build_srd(p, S_OUT, P_OUT, S * D * 2)
    p(f"s_mov_b64 s[{S_DBG}:{S_DBG+1}], s[{P_DBG}:{P_DBG+1}]")
    Q.att_setup_scalar(p)
    for r in range(ACC, ACC + 144, 2): p(f"v_mov_b64 v[{r}:{r+1}], 0")
    for k, t in Q.addr_update(1): p(t)
    p("s_waitcnt vmcnt(18)")
    p("s_barrier")
    if "mid" not in EXP and "its" not in EXP: fstamp(p, 2)
    for w in range(1, 4):
        p(f"s_cmp_eq_u32 s{S_W}, {w}")
        p(f"s_cbranch_scc1 L_q_wave{w}")
    for w in range(4):
        rh, ch = w >> 1, w & 1
        p.label(f"L_q_wave{w}")
        for t in Q.q_reads(rh, ch, 0, 0): p(t)
        Q.gen_loop(p, f"L_q_loop{w}", 12, lambda par: Q.q_mfmas(rh, ch, par), lambda half, par: Q.q_reads(rh, ch, half, par),
                   Q.q_dmas(), Q.STG, 64 * 3 * D * 2, True, 1)
        fstamp(p, 3)
        if "loopsonly" in EXP: p("s_branch L_diag_end")
        p("s_waitcnt vmcnt(0) lgkmcnt(0)")
        p("s_barrier")
        p(f"v_lshlrev_b32 v{Q.V_EX0}, 3, v{L}")
        p(f"v_add_u32 v{Q.V_EX}, {rh * 10240}, v{Q.V_EX0}")
        Q.q_export_halo(p, rh, ch)
        p(f"s_branch L_q_ex{ch}")
    for ch in (0, 1):
        p.label(f"L_q_ex{ch}")
        Q.q_exchange(p, ch)
        if ch == 0: p("s_branch L_q_att")
    p.label("L_q_att")
    if "mid" in EXP: fstamp(p, 1)
    phase2_entry_common(p, "q")
    if "mid" in EXP: fstamp(p, 2)
    sp = Sprinkle(p, P2.prefetch_list(), SPRINKLE_Q)
    Q.att_setup_vector(sp)
    Q.attention(sp)
    sp.flush()
    if "mid" in EXP: fstamp(p, 4)
    p("s_waitcnt vmcnt(0)")
    if "mid" in EXP: fstamp(p, 5)
    p("s_barrier")
    p(f"s_lshl_b32 s{S_T0}, s{S_J}, 2")
    p(f"s_add_u32 s{S_T0}, s{S_T0}, {DBG_Q * 4}")
    signal(p, f"s{S_T0}", "L_q_sig")
    p("s_branch L_phase2")

def gen_role_h(p):
    L = V_LANE
    p.label("L_role_h")
    if "noh" in EXP: p("s_endpgm")
    Hh.h_setup(p)
    p(f"s_mov_b32 s{S_FD}, s{S_T2}")
    p("s_waitcnt lgkmcnt(0)")
    build_srd(p, S_X, P_AX, S * D * 2)
    build_srd(p, S_WT, P_W1, D * F * 2)
    p(f"s_mov_b32 s{S_XSZ}, {S * D * 2}")
    p(f"s_mov_b32 s{S_WSZ}, {D * F * 2}")
    p(f"s_lshl_b32 s{S_WOFS}, s{S_W}, 10")
    for r in (S_RD, S_CNT): p(f"s_mov_b32 s{r}, 0")
    p(f"s_and_b32 s{S_PAR}, s{S_J}, {0 if 'nopar' in EXP else 1}")
    first, second = Hh.h_dmas()
    for st in range(2):
        for t in Q.prologue_stage(st, Hh.HSTG, 64 * F * 2, False): p(t)
        for m0, d in first + second: p(m0); p(d)
    if "mid" not in EXP and "its" not in EXP: fstamp(p, 1)
    build_srd(p, S_AUX, P_B1, F * 2)
    build_srd(p, S_AUX2, P_GW, D * 2)
    if "norp" in EXP: p(f"s_mov_b32 s{Hh.S_RU}, 999")
    else: Hh.repack_issue(p, "")
    Hh.h_side_issue(p, "")
    for t in Q.prologue_stage(2, Hh.HSTG, 64 * F * 2, False): p(t)
    for m0, d in first: p(m0); p(d)
    build_srd(p, S_AF, P_WS, AF_BYTES)
    build_srd(p, S_WP, P_WS, WP_BYTES, add=WP_OFF)
    build_srd(p, S_OUT, P_OUT, S * D * 2)
    p(f"s_mov_b64 s[{S_DBG}:{S_DBG+1}], s[{P_DBG}:{P_DBG+1}]")
    build_srd(p, S_AUX2, P_AX, S * D * 2)
    for r in range(ACC, ACC + 112, 2): p(f"v_mov_b64 v[{r}:{r+1}], 0")
    for k, t in Q.addr_update(2): p(t)
    p("s_waitcnt vmcnt(16)")
    p("s_barrier")
    if "mid" not in EXP and "its" not in EXP: fstamp(p, 2)
    for t in Hh.h_reads(0, 0): p(t)
    def hook(pp):
        pp(f"s_cmp_lt_u32 s{S_CNT}, 2")
        pp("s_cbranch_scc1 L_h_hook")
        pp.label("L_h_hook_ret")
    Q.gen_loop(p, "L_h_loop", 11, Hh.h_mfmas, Hh.h_reads, Hh.h_dmas(), Hh.HSTG, 64 * F * 2, False, 2, hook)
    fstamp(p, 3)
    if "loopsonly" in EXP: p("s_branch L_diag_end")
    Hh.h_gate_issue(p)
    p("s_waitcnt lgkmcnt(0)")
    p(f"s_add_u32 s{P2.S_GS}, s{S_AF}, {G_OFF}")
    p(f"s_addc_u32 s{P2.S_GS+1}, s{S_AF+1}, 0")
    p(f"s_mov_b32 s{P2.S_GS+2}, {G_BYTES}")
    p(f"s_mov_b32 s{P2.S_GS+3}, 0x20000")
    p(f"s_cmp_ge_u32 s{S_W}, 2")
    p("s_cbranch_scc1 L_h_epi1")
    for ch in (0, 1):
        if ch == 1: p.label("L_h_epi1")
        Hh.h_epilogue(p, ch, S_FD)
        p("s_branch L_h_done")
    p.label("L_h_hook")
    p(f"s_cmp_eq_u32 s{S_CNT}, 1")
    p("s_cbranch_scc1 L_h_hook_sig")
    Hh.repack_finish(p, "", 63)
    p("s_branch L_h_hook_ret")
    p.label("L_h_hook_sig")
    signal(p, DBG_WP * 4, "L_h_wp_sig")
    p("s_branch L_h_hook_ret")
    p.label("L_h_done")
    p("s_waitcnt vmcnt(16)")
    Hh.h_gate(p, P2.S_GS)
    if "mid" in EXP: fstamp(p, 4)
    p("s_waitcnt vmcnt(0)")
    if "mid" in EXP: fstamp(p, 5)
    p("s_barrier")
    p(f"s_lshl_b32 s{S_T0}, s{S_J}, 2")
    p(f"s_add_u32 s{S_T0}, s{S_T0}, {DBG_H * 4}")
    signal(p, f"s{S_T0}", "L_h_sig")
    if "mid" in EXP: fstamp(p, 1)
    phase2_entry_common(p, "h")
    if "mid" in EXP: fstamp(p, 2)
    for g in P2.prefetch_list():
        for x in g: p(x)

SPRINKLE_Q, SPRINKLE_H = 12, 9
P2MAP = "A"

def gen_fused(p, name):
    kernel_head(p, name)
    p("s_cmp_ge_u32 s2, 256")
    p("s_cbranch_scc1 L_end")
    fstamp(p, 0)
    p(f"s_load_dwordx4 s[{P_AX}:{P_AX+3}], s[0:1], {KA_AX}")
    p(f"s_load_dwordx2 s[{P_WO}:{P_WO+1}], s[0:1], {KA_WO}")
    p(f"s_load_dwordx4 s[{P_W1}:{P_W1+3}], s[0:1], {KA_W1}")
    p(f"s_load_dwordx4 s[{P_W2}:{P_W2+3}], s[0:1], {KA_W2}")
    p(f"s_load_dwordx4 s[{P_GW}:{P_GW+3}], s[0:1], {KA_GW}")
    p(f"s_load_dwordx4 s[{P_DBG}:{P_DBG+3}], s[0:1], {KA_DBG}")
    p(f"v_and_b32 v{V_LANE}, 63, v0")
    p("v_lshrrev_b32 v2, 6, v0")
    p("s_and_b32 s3, s2, 7")
    p(f"s_lshr_b32 s{S_T1}, s2, 3")
    p(f"v_readfirstlane_b32 s{S_W}, v2")
    p(f"s_and_b32 s{S_T2}, s3, 3")
    p(f"s_lshr_b32 s{S_J}, s{S_T2}, 1")
    p(f"s_lshl_b32 s{S_J}, s{S_J}, 3")
    p(f"s_lshr_b32 s{S_T0}, s{S_T1}, 2")
    p(f"s_add_u32 s{S_J}, s{S_J}, s{S_T0}")
    p(f"s_and_b32 s{S_I}, s{S_T2}, 1")
    p(f"s_lshl_b32 s{S_I}, s{S_I}, 2")
    p(f"s_and_b32 s{S_T0}, s{S_T1}, 3")
    p(f"s_add_u32 s{S_I}, s{S_I}, s{S_T0}")
    if P2MAP == "A":
        p(f"s_lshr_b32 s{S_R2}, s{S_T1}, 3")
        p(f"s_lshl_b32 s{S_T0}, s3, 2")
        p(f"s_add_u32 s{S_R2}, s{S_R2}, s{S_T0}")
        p(f"s_and_b32 s{S_N2}, s{S_T1}, 7")
    else:
        p(f"s_lshr_b32 s{S_R2}, s3, 1")
        p(f"s_lshl_b32 s{S_R2}, s{S_R2}, 3")
        p(f"s_lshr_b32 s{S_T0}, s{S_T1}, 2")
        p(f"s_add_u32 s{S_R2}, s{S_R2}, s{S_T0}")
        p(f"s_and_b32 s{S_N2}, s3, 1")
        p(f"s_lshl_b32 s{S_N2}, s{S_N2}, 2")
        p(f"s_and_b32 s{S_T0}, s{S_T1}, 3")
        p(f"s_add_u32 s{S_N2}, s{S_N2}, s{S_T0}")
    p("s_cmp_ge_u32 s3, 4")
    p("s_cbranch_scc1 L_role_h")
    gen_role_q(p)
    gen_role_h(p)
    p.label("L_phase2")
    p(f"s_lshl_b32 s{S_T1}, s{S_R2}, 1")
    p(f"s_and_b32 s{S_T1}, s{S_T1}, 0xfffffffc")
    if DBG_H: p(f"s_add_u32 s{S_T1}, s{S_T1}, {DBG_H * 4}")
    wait_counter(p, f"s{S_T1}", 8, "L_p2_h_poll")
    if "mid" in EXP: fstamp(p, 6)
    P2.p2_main(p)
    if "mid" not in EXP and "its" not in EXP: fstamp(p, 6)
    P2.p2_final(p)
    p.label("L_diag_end")
    if "dbgtime" in EXP:
        p("s_waitcnt vmcnt(0)"); fstamp(p, 7)
    if common.DIAG: flush_stamps(p)
    p.label("L_end")
    p("s_endpgm")
    p(KD.format(name=name, vgpr=512, sgpr=102, acc=256))

def flush_stamps(p):
    p("s_waitcnt vmcnt(0) lgkmcnt(0)")
    p(f"{'s_memtime' if common.CYC else 's_memrealtime'} s[16:17]")
    p("s_waitcnt lgkmcnt(0)")
    p(f"s_add_u32 s20, s{S_AF}, {common.STAMP_OFF}")
    p(f"s_addc_u32 s21, s{S_AF+1}, 0")
    p("s_mov_b32 s22, 0x100000"); p("s_mov_b32 s23, 0x20000")
    p(f"s_lshl_b32 s24, s2, 2"); p(f"s_add_u32 s24, s24, s{S_W}"); p("s_lshl_b32 s24, s24, 7")
    for i, r in enumerate(STAMPS + [16]):
        p(f"v_mov_b32 v2, s{r}"); p(f"v_mov_b32 v3, s{r+1}"); p("v_mov_b32 v4, s24")
        p(f"buffer_store_dwordx2 v[2:3], v4, s[20:23], 0 offen offset:{8 * i}")
        p("s_waitcnt vmcnt(0)")

def build(path):
    p = Prog()
    head = open("cdna_kernels/%s.s.ref" % NAME).read().split("; Override launch geometry")[0].rstrip("\n").split("\n")
    head.append("; Override launch geometry by editing the next line (default: block=256,")
    head.append("; @launch grid=(256,1,1) block=(256,1,1) lds=%d" % LDS_BYTES)
    p('.amdgcn_target "amdgcn-amd-amdhsa--gfx950"'); p(".text")
    gen_fused(p, NAME + "_kernel")
    body, n = pad_hazards_fast(p.lines)
    open(path, "w").write("\n".join(head + body) + "\n")
    print("written", path, "nops", n, "lines", len(body))

if __name__ == "__main__":
    args = sys.argv[1:]
    if "--diag" in args: common.DIAG = True; args.remove("--diag")
    if "--cyc" in args: common.CYC = True; args.remove("--cyc")
    build(args[0] if args else "fused.s")
```

```python
from asmlib import *
from common import *
import common, os

NK = 20
NSTG = 10
RING = 3
WP_OFF = G_OFF + G_BYTES
WP_BYTES = 8 * KS_T * 5 * 1024
WS_END = WP_OFF + WP_BYTES
common.STAMP_OFF = WS_END
DBG_H, DBG_Q, DBG_WP = (16 if 'dbgtime' in common.EXP else 0), 32, 48

S_X, S_WT, S_FX, S_AF, S_WP, S_AUX, S_AUX2, S_OUT = 16, 20, 24, 28, 32, 36, 40, 44
S_DBG = 48
S_W, S_J, S_I = 50, 51, 52
S_RD, S_DM, S_KW, S_KX, S_KF, S_FD, S_FSTEP, S_CNT = 53, 54, 55, 56, 57, 58, 59, 60
S_T0, S_T1, S_T2 = 61, 62, 63
S_XSZ, S_WSZ, S_FSZ, S_WOFS = 64, 65, 66, 67
S_T3 = 15
S_PAR = 14
S_MASK = 68
S_SO = 90
S_R2, S_N2 = 95, 96
S_SA, S_SW = 97, 3
KP = 68
P_AX, P_WQKV, P_WO, P_W1, P_B1, P_W2, P_B2, P_GW, P_OUT, P_DBG, P_WS = 68, 70, 72, 76, 78, 80, 82, 84, 86, 88, 90
STAMPS = [98, 100, 4, 6, 8, 10, 12]

V_LANE = 1
V_DMA = 4
ACC = 16
V_XB0, V_XB1, V_WB0, V_WB1 = 240, 241, 242, 243
V_XA0, V_XA1, V_WA0, V_WA1 = 244, 245, 246, 247
V_T = 248
V_PW = 240
V_PA = 244
A_X = 0
A_WF = 40
NWR, NAR = 7, 6
A_WR = 0
A_AR = 140
ACCB, ACCA = 64, 144
V_G = 16
V_B2 = 20

def fstamp(p, i):
    if "dbgtime" in common.EXP:
        lab = f"L_dt_{len(p.lines) if hasattr(p, 'lines') else id(p)}_{i}"
        p(f"s_cmp_lg_u32 s{S_W}, 0") if i else p("s_nop 0")
        if i: p(f"s_cbranch_scc1 {lab}")
        p("s_memrealtime s[98:99]")
        if i == 0: p(f"s_load_dwordx2 s[100:101], s[0:1], {KA_DBG}")
        p("s_waitcnt lgkmcnt(0)")
        if i == 0: p("s_not_b32 s98, s98")
        p("v_mov_b32 v2, s98") if i else p("v_mov_b32 v2, s98")
        p(f"v_mov_b32 v3, {4 * i}")
        p("s_mov_b64 exec, 1")
        p("global_atomic_umax v3, v2, s[100:101] sc1")
        p("s_mov_b64 exec, -1")
        if i: p.label(lab)
        return
    if common.DIAG:
        r = STAMPS[i]
        p(f"{'s_memtime' if common.CYC else 's_memrealtime'} s[{r}:{r+1}]")

class Sched:
    COST = {"d": 2, "v": 3, "s": 1, "a": 1}
    def __init__(self, mfmas):
        self.m = mfmas
        self.g = [[] for _ in mfmas]
        self.load = [0] * len(mfmas)
    def put(self, gap, kind, text):
        gap = max(0, min(gap, len(self.m) - 1))
        self.g[gap].append((kind, text)); self.load[gap] += self.COST[kind]
    def first_fit(self, kind, text, lo, hi=None):
        hi = len(self.m) - 1 if hi is None else hi
        c = self.COST[kind]
        for g in range(max(lo, 0), hi + 1):
            if self.load[g] + c <= 3:
                self.put(g, kind, text); return g
        g = min(range(max(lo, 0), hi + 1), key=lambda x: self.load[x])
        self.put(g, kind, text); return g
    def emit(self, p):
        for m, g in zip(self.m, self.g):
            p(m)
            for k, t in g: p(t)

def schedule_step(mfmas, ds, dmas, pre_scalars, post_scalars, ds_from=0):
    S = Sched(mfmas)
    n = len(mfmas); nd = len(dmas)
    last = n - 3
    pos = [int((k + 0.6) * (last - 1) / nd) + 1 for k in range(nd)] if nd else []
    for (m0, dma), g in zip(dmas, pos): S.put(g, "v", dma)
    for (m0, dma), g in zip(dmas, pos):
        if m0:
            prev = max([q for q in pos if q < g], default=-1)
            cand = [x for x in range(prev + 1, g) if S.load[x] <= 2]
            S.put(cand[-1] if cand else g - 1, "s", m0)
    g = 0
    for t in pre_scalars:
        g = S.first_fit("s", t, g, (pos[0] - 1) if pos else None)
    g = ds_from; lastds = 0
    for t in ds:
        g = S.first_fit("d", t, g); lastds = g; g += 1
    g = max(lastds, pos[-1] if pos else 0)
    for k, t in post_scalars:
        g = S.first_fit(k, t, g)
    return S

def build_srd(p, s, ptr, nbytes, add=0):
    if add:
        p(f"s_add_u32 s{s}, s{ptr}, {add}")
        p(f"s_addc_u32 s{s+1}, s{ptr+1}, 0")
        p(f"s_and_b32 s{s+1}, s{s+1}, 0xffff")
    else:
        p(f"s_mov_b32 s{s}, s{ptr}")
        p(f"s_and_b32 s{s+1}, s{ptr+1}, 0xffff")
    p(f"s_mov_b32 s{s+2}, {nbytes}")
    p(f"s_mov_b32 s{s+3}, 0x20000")

def swap23(p, dst, src, tmp, mask):
    p(f"v_and_b32 v{dst}, {mask:#x}, v{src}")
    p(f"v_and_b32 v{tmp}, 4, v{src}")
    p(f"v_lshl_add_u32 v{dst}, v{tmp}, 1, v{dst}")
    p(f"v_and_b32 v{tmp}, 8, v{src}")
    p(f"v_lshrrev_b32 v{tmp}, 1, v{tmp}")
    p(f"v_add_u32 v{dst}, v{dst}, v{tmp}")

def signal(p, dword_sgpr_or_const, label):
    p(f"s_cmp_lg_u32 s{S_W}, 0")
    p(f"s_cbranch_scc1 {label}")
    p(f"v_mov_b32 v2, {dword_sgpr_or_const}")
    p("v_mov_b32 v3, 1")
    p("s_mov_b64 exec, 1")
    p(f"global_atomic_add v2, v3, s[{S_DBG}:{S_DBG+1}] sc1")
    p("s_mov_b64 exec, -1")
    p.label(label)

SPIN_LIMIT = 400000
POLL_SLEEP = int(os.environ.get("POLL_SLEEP", "4"))
def poll_loop(p, byte_off_src, target, label):
    p(f"v_mov_b32 v2, {byte_off_src}")
    p(f"s_mov_b32 s{S_T3}, {SPIN_LIMIT}")
    p.label(label)
    p(f"global_load_dword v3, v2, s[{S_DBG}:{S_DBG+1}] sc1")
    p(f"s_sub_u32 s{S_T3}, s{S_T3}, 1")
    p(f"s_cbranch_scc1 {label}_out")
    p("s_waitcnt vmcnt(0)")
    p(f"v_readfirstlane_b32 s{S_T0}, v3")
    p("s_nop 3")
    p(f"s_cmp_ge_u32 s{S_T0}, {target}")
    p(f"s_cbranch_scc1 {label}_out")
    if POLL_SLEEP: p(f"s_sleep {POLL_SLEEP}")
    p(f"s_branch {label}")
    p.label(f"{label}_out")

def wait_counter(p, byte_off_src, target, label):
    p(f"s_cmp_lg_u32 s{S_W}, 0")
    p(f"s_cbranch_scc1 {label}_skip")
    poll_loop(p, byte_off_src, target, label)
    p.label(f"{label}_skip")
    p("s_barrier")
```

```python
from asmlib import *
from common import *
import common, os

NK = 20
NSTG = 10
RING = 3
WP_OFF = G_OFF + G_BYTES
WP_BYTES = 8 * KS_T * 5 * 1024
WS_END = WP_OFF + WP_BYTES
common.STAMP_OFF = WS_END
DBG_H, DBG_Q, DBG_WP = (16 if 'dbgtime' in common.EXP else 0), 32, 48

S_X, S_WT, S_FX, S_AF, S_WP, S_AUX, S_AUX2, S_OUT = 16, 20, 24, 28, 32, 36, 40, 44
S_DBG = 48
S_W, S_J, S_I = 50, 51, 52
S_RD, S_DM, S_KW, S_KX, S_KF, S_FD, S_FSTEP, S_CNT = 53, 54, 55, 56, 57, 58, 59, 60
S_T0, S_T1, S_T2 = 61, 62, 63
S_XSZ, S_WSZ, S_FSZ, S_WOFS = 64, 65, 66, 67
S_T3 = 15
S_PAR = 14
S_MASK = 68
S_SO = 90
S_R2, S_N2 = 95, 96
S_SA, S_SW = 97, 3
KP = 68
P_AX, P_WQKV, P_WO, P_W1, P_B1, P_W2, P_B2, P_GW, P_OUT, P_DBG, P_WS = 68, 70, 72, 76, 78, 80, 82, 84, 86, 88, 90
STAMPS = [98, 100, 4, 6, 8, 10, 12]

V_LANE = 1
V_DMA = 4
ACC = 16
V_XB0, V_XB1, V_WB0, V_WB1 = 240, 241, 242, 243
V_XA0, V_XA1, V_WA0, V_WA1 = 244, 245, 246, 247
V_T = 248
V_PW = 240
V_PA = 244
A_X = 0
A_WF = 40
NWR, NAR = 7, 6
A_WR = 0
A_AR = 140
ACCB, ACCA = 64, 144
V_G = 16
V_B2 = 20

def fstamp(p, i):
    if "dbgtime" in common.EXP:
        lab = f"L_dt_{len(p.lines) if hasattr(p, 'lines') else id(p)}_{i}"
        p("s_and_b32 s98, s2, 0x38")
        if i: p(f"s_or_b32 s98, s98, s{S_W}")
        else:
            p("v_readfirstlane_b32 s99, v0")
            p("s_nop 3")
            p("s_or_b32 s98, s98, s99")
            p(f"s_load_dwordx2 s[100:101], s[0:1], {KA_DBG}")
        p("s_cmp_lg_u32 s98, 0")
        p(f"s_cbranch_scc1 {lab}")
        p("s_memrealtime s[98:99]")
        p("s_waitcnt lgkmcnt(0)")
        if i == 0: p("s_not_b32 s98, s98")
        p("v_mov_b32 v2, s98")
        p(f"v_mov_b32 v3, {4 * i}")
        p("s_mov_b64 exec, 1")
        p("global_atomic_umax v3, v2, s[100:101] sc1")
        p("s_mov_b64 exec, -1")
        p.label(lab)
        return
    if common.DIAG:
        r = STAMPS[i]
        p(f"{'s_memtime' if common.CYC else 's_memrealtime'} s[{r}:{r+1}]")

class Sched:
    COST = {"d": 2, "v": 3, "s": 1, "a": 1}
    def __init__(self, mfmas):
        self.m = mfmas
        self.g = [[] for _ in mfmas]
        self.load = [0] * len(mfmas)
    def put(self, gap, kind, text):
        gap = max(0, min(gap, len(self.m) - 1))
        self.g[gap].append((kind, text)); self.load[gap] += self.COST[kind]
    def first_fit(self, kind, text, lo, hi=None):
        hi = len(self.m) - 1 if hi is None else hi
        c = self.COST[kind]
        for g in range(max(lo, 0), hi + 1):
            if self.load[g] + c <= 3:
                self.put(g, kind, text); return g
        g = min(range(max(lo, 0), hi + 1), key=lambda x: self.load[x])
        self.put(g, kind, text); return g
    def emit(self, p):
        for m, g in zip(self.m, self.g):
            p(m)
            for k, t in g: p(t)

def schedule_step(mfmas, ds, dmas, pre_scalars, post_scalars, ds_from=0):
    S = Sched(mfmas)
    n = len(mfmas); nd = len(dmas)
    last = n - 3
    pos = [int((k + 0.6) * (last - 1) / nd) + 1 for k in range(nd)] if nd else []
    for (m0, dma), g in zip(dmas, pos): S.put(g, "v", dma)
    for (m0, dma), g in zip(dmas, pos):
        if m0:
            prev = max([q for q in pos if q < g], default=-1)
            cand = [x for x in range(prev + 1, g) if S.load[x] <= 2]
            S.put(cand[-1] if cand else g - 1, "s", m0)
    g = 0
    for t in pre_scalars:
        g = S.first_fit("s", t, g, (pos[0] - 1) if pos else None)
    g = ds_from; lastds = 0
    for t in ds:
        g = S.first_fit("d", t, g); lastds = g; g += 1
    g = max(lastds, pos[-1] if pos else 0)
    for k, t in post_scalars:
        g = S.first_fit(k, t, g)
    return S

def build_srd(p, s, ptr, nbytes, add=0):
    if add:
        p(f"s_add_u32 s{s}, s{ptr}, {add}")
        p(f"s_addc_u32 s{s+1}, s{ptr+1}, 0")
        p(f"s_and_b32 s{s+1}, s{s+1}, 0xffff")
    else:
        p(f"s_mov_b32 s{s}, s{ptr}")
        p(f"s_and_b32 s{s+1}, s{ptr+1}, 0xffff")
    p(f"s_mov_b32 s{s+2}, {nbytes}")
    p(f"s_mov_b32 s{s+3}, 0x20000")

def swap23(p, dst, src, tmp, mask):
    p(f"v_and_b32 v{dst}, {mask:#x}, v{src}")
    p(f"v_and_b32 v{tmp}, 4, v{src}")
    p(f"v_lshl_add_u32 v{dst}, v{tmp}, 1, v{dst}")
    p(f"v_and_b32 v{tmp}, 8, v{src}")
    p(f"v_lshrrev_b32 v{tmp}, 1, v{tmp}")
    p(f"v_add_u32 v{dst}, v{dst}, v{tmp}")

def signal(p, dword_sgpr_or_const, label):
    p(f"s_cmp_lg_u32 s{S_W}, 0")
    p(f"s_cbranch_scc1 {label}")
    p(f"v_mov_b32 v2, {dword_sgpr_or_const}")
    p("v_mov_b32 v3, 1")
    p("s_mov_b64 exec, 1")
    p(f"global_atomic_add v2, v3, s[{S_DBG}:{S_DBG+1}] sc1")
    p("s_mov_b64 exec, -1")
    p.label(label)

SPIN_LIMIT = 400000
POLL_SLEEP = int(os.environ.get("POLL_SLEEP", "4"))
def poll_loop(p, byte_off_src, target, label):
    p(f"v_mov_b32 v2, {byte_off_src}")
    p(f"s_mov_b32 s{S_T3}, {SPIN_LIMIT}")
    p.label(label)
    p(f"global_load_dword v3, v2, s[{S_DBG}:{S_DBG+1}] sc1")
    p(f"s_sub_u32 s{S_T3}, s{S_T3}, 1")
    p(f"s_cbranch_scc1 {label}_out")
    p("s_waitcnt vmcnt(0)")
    p(f"v_readfirstlane_b32 s{S_T0}, v3")
    p("s_nop 3")
    p(f"s_cmp_ge_u32 s{S_T0}, {target}")
    p(f"s_cbranch_scc1 {label}_out")
    if POLL_SLEEP: p(f"s_sleep {POLL_SLEEP}")
    p(f"s_branch {label}")
    p.label(f"{label}_out")

def wait_counter(p, byte_off_src, target, label):
    p(f"s_cmp_lg_u32 s{S_W}, 0")
    p(f"s_cbranch_scc1 {label}_skip")
    poll_loop(p, byte_off_src, target, label)
    p.label(f"{label}_skip")
    p("s_barrier")
```

```python
from asmlib import *
from common import *
import common, os

NK = 20
NSTG = 10
RING = 3
WP_OFF = G_OFF + G_BYTES
WP_BYTES = 8 * KS_T * 5 * 1024
WS_END = WP_OFF + WP_BYTES
common.STAMP_OFF = WS_END
DBG_H, DBG_Q, DBG_WP = (16 if 'dbgtime' in common.EXP else 0), 32, 48

S_X, S_WT, S_FX, S_AF, S_WP, S_AUX, S_AUX2, S_OUT = 16, 20, 24, 28, 32, 36, 40, 44
S_DBG = 48
S_W, S_J, S_I = 50, 51, 52
S_RD, S_DM, S_KW, S_KX, S_KF, S_FD, S_FSTEP, S_CNT = 53, 54, 55, 56, 57, 58, 59, 60
S_T0, S_T1, S_T2 = 61, 62, 63
S_XSZ, S_WSZ, S_FSZ, S_WOFS = 64, 65, 66, 67
S_T3 = 15
S_ROLE = 60
S_PAR = 14
S_MASK = 68
S_SO = 90
S_R2, S_N2 = 95, 96
S_SA, S_SW = 97, 3
KP = 68
P_AX, P_WQKV, P_WO, P_W1, P_B1, P_W2, P_B2, P_GW, P_OUT, P_DBG, P_WS = 68, 70, 72, 76, 78, 80, 82, 84, 86, 88, 90
STAMPS = [98, 100, 4, 6, 8, 10, 12]

V_LANE = 1
V_DMA = 4
ACC = 16
V_XB0, V_XB1, V_WB0, V_WB1 = 240, 241, 242, 243
V_XA0, V_XA1, V_WA0, V_WA1 = 244, 245, 246, 247
V_T = 248
V_PW = 240
V_PA = 244
A_X = 0
A_WF = 40
NWR, NAR = 7, 6
A_WR = 0
A_AR = 140
ACCB, ACCA = 64, 144
V_G = 16
V_B2 = 20

def fstamp(p, i):
    if "dbgtime" in common.EXP:
        lab = f"L_dt_{len(p.lines) if hasattr(p, 'lines') else id(p)}_{i}"
        p("s_and_b32 s98, s2, 0x38")
        if i: p(f"s_or_b32 s98, s98, s{S_W}")
        else:
            p("v_readfirstlane_b32 s99, v0")
            p("s_nop 3")
            p("s_or_b32 s98, s98, s99")
            p(f"s_load_dwordx2 s[100:101], s[0:1], {KA_DBG}")
        p("s_cmp_lg_u32 s98, 0")
        p(f"s_cbranch_scc1 {lab}")
        p("s_memrealtime s[98:99]")
        p("s_waitcnt lgkmcnt(0)")
        if i == 0: p("s_not_b32 s98, s98")
        p("v_mov_b32 v2, s98")
        p(f"v_mov_b32 v3, {4 * i}")
        p("s_mov_b64 exec, 1")
        p("global_atomic_umax v3, v2, s[100:101] sc1")
        p("s_mov_b64 exec, -1")
        p.label(lab)
        return
    if common.DIAG:
        r = STAMPS[i]
        p(f"{'s_memtime' if common.CYC else 's_memrealtime'} s[{r}:{r+1}]")

class Sched:
    COST = {"d": 2, "v": 3, "s": 1, "a": 1}
    def __init__(self, mfmas):
        self.m = mfmas
        self.g = [[] for _ in mfmas]
        self.load = [0] * len(mfmas)
    def put(self, gap, kind, text, tag=None):
        gap = max(0, min(gap, len(self.m) - 1))
        self.g[gap].append((kind, text, tag)); self.load[gap] += self.COST[kind]
    def first_fit(self, kind, text, lo, hi=None, tag=None, cap=3):
        hi = len(self.m) - 1 if hi is None else hi
        lo = max(0, min(lo, hi))
        c = self.COST[kind]
        for g in range(lo, hi + 1):
            if self.load[g] + c <= cap and not (kind == "a" and any(k == "a" for k, _, _ in self.g[g])):
                self.put(g, kind, text, tag); return g
        g = min(range(lo, hi + 1), key=lambda x: self.load[x])
        self.put(g, kind, text, tag); return g
    def emit(self, p, dsq, barrier_at=None, barrier_code=None):
        for k, ((m, needs), g) in enumerate(zip(self.m, self.g)):
            if barrier_at is not None and k == barrier_at:
                barrier_code(p); del dsq[:]
            if any(t in needs for t in dsq):
                ahead = set(needs)
                for m2, n2 in self.m[k + 1:k + 4]: ahead |= n2
                last = max(i for i, t in enumerate(dsq) if t in ahead)
                n = min(15, len(dsq) - 1 - last)
                p(f"s_waitcnt lgkmcnt({n})")
                del dsq[:len(dsq) - n]
            p(m)
            for kind, t, tag in g:
                p(t)
                if kind == "d": dsq.append(tag)

def schedule_step(mfmas, ds, dmas, post_scalars, pre_scalars=(), ds_from=0, dma_from=1):
    S = Sched(mfmas)
    n = len(mfmas); nd = len(dmas)
    g = 0
    for k, t in pre_scalars:
        g = S.first_fit(k, t, g, ds_from - 1)
    span = n - 2 - dma_from
    pos = [dma_from + int((k + 0.5) * span / nd) for k in range(nd)] if nd else []
    for (m0, dma), g in zip(dmas, pos): S.put(g, "v", dma)
    for (m0, dma), g in zip(dmas, pos):
        if m0:
            prev = max([q for q in pos if q < g], default=-1)
            cand = [x for x in range(max(prev + 1, ds_from), g) if S.load[x] <= 2]
            S.put(cand[-1] if cand else g - 1, "s", m0)
    g = ds_from; lastds = ds_from
    for t, tag in ds:
        g = S.first_fit("d", t, g, tag=tag); lastds = g; g += 1
    g = max(lastds, pos[-1] if pos else 0)
    rest = list(post_scalars)
    while rest:
        k, t = rest[0]
        c = S.COST[k]
        room = [x for x in range(g, n) if S.load[x] + c <= 3 and not (k == "a" and any(kk == "a" for kk, _, _ in S.g[x]))]
        if not room: break
        g = room[0]; S.put(g, k, t); rest.pop(0)
    return S, rest

def build_srd(p, s, ptr, nbytes, add=0):
    if add:
        p(f"s_add_u32 s{s}, s{ptr}, {add}")
        p(f"s_addc_u32 s{s+1}, s{ptr+1}, 0")
        p(f"s_and_b32 s{s+1}, s{s+1}, 0xffff")
    else:
        p(f"s_mov_b32 s{s}, s{ptr}")
        p(f"s_and_b32 s{s+1}, s{ptr+1}, 0xffff")
    p(f"s_mov_b32 s{s+2}, {nbytes}")
    p(f"s_mov_b32 s{s+3}, 0x20000")

def swap23(p, dst, src, tmp, mask):
    p(f"v_and_b32 v{dst}, {mask:#x}, v{src}")
    p(f"v_and_b32 v{tmp}, 4, v{src}")
    p(f"v_lshl_add_u32 v{dst}, v{tmp}, 1, v{dst}")
    p(f"v_and_b32 v{tmp}, 8, v{src}")
    p(f"v_lshrrev_b32 v{tmp}, 1, v{tmp}")
    p(f"v_add_u32 v{dst}, v{dst}, v{tmp}")

def signal(p, dword_sgpr_or_const, label):
    p(f"s_cmp_lg_u32 s{S_W}, 0")
    p(f"s_cbranch_scc1 {label}")
    p(f"v_mov_b32 v2, {dword_sgpr_or_const}")
    p("v_mov_b32 v3, 1")
    p("s_mov_b64 exec, 1")
    p(f"global_atomic_add v2, v3, s[{S_DBG}:{S_DBG+1}] sc1")
    p("s_mov_b64 exec, -1")
    p.label(label)

SPIN_LIMIT = 400000
POLL_SLEEP = int(os.environ.get("POLL_SLEEP", "4"))
def poll_loop(p, byte_off_src, target, label):
    p(f"v_mov_b32 v2, {byte_off_src}")
    p(f"s_mov_b32 s{S_T3}, {SPIN_LIMIT}")
    p.label(label)
    p(f"global_load_dword v3, v2, s[{S_DBG}:{S_DBG+1}] sc1")
    p(f"s_sub_u32 s{S_T3}, s{S_T3}, 1")
    p(f"s_cbranch_scc1 {label}_out")
    p("s_waitcnt vmcnt(0)")
    p(f"v_readfirstlane_b32 s{S_T0}, v3")
    p("s_nop 3")
    p(f"s_cmp_ge_u32 s{S_T0}, {target}")
    p(f"s_cbranch_scc1 {label}_out")
    if POLL_SLEEP: p(f"s_sleep {POLL_SLEEP}")
    p(f"s_branch {label}")
    p.label(f"{label}_out")

def wait_counter(p, byte_off_src, target, label):
    p(f"s_cmp_lg_u32 s{S_W}, 0")
    p(f"s_cbranch_scc1 {label}_skip")
    poll_loop(p, byte_off_src, target, label)
    p.label(f"{label}_skip")
    p("s_barrier")

def poll_issue(p, byte_off_src, vdst, label):
    p(f"s_cmp_lg_u32 s{S_W}, 0")
    p(f"s_cbranch_scc1 {label}")
    p(f"v_mov_b32 v2, {byte_off_src}")
    p(f"global_load_dword v{vdst}, v2, s[{S_DBG}:{S_DBG+1}] sc1")
    p.label(label)

def poll_check(p, byte_off_src, vsrc, younger, target, label, barrier=True):
    p(f"s_cmp_lg_u32 s{S_W}, 0")
    p(f"s_cbranch_scc1 {label}_skip")
    p(f"s_waitcnt vmcnt({younger})")
    p(f"v_readfirstlane_b32 s{S_T0}, v{vsrc}")
    p("s_nop 3")
    p(f"s_cmp_ge_u32 s{S_T0}, {target}")
    p(f"s_cbranch_scc1 {label}_skip")
    poll_loop(p, byte_off_src, target, label)
    p.label(f"{label}_skip")
    if barrier: p("s_barrier")
```

```python
from fz_common import *
from fz_q import lane_bases, x_dma_lane

HP = 448
HXOFF = 64 * HP
HSTG = HXOFF + 128 * 128
RP_LDS = RING * HSTG
GX, GW_, B1 = 160, 180, 200

def h_dmas():
    def W(q): return (f"s_add_u32 m0, s{S_DM}, {q * 4096}", f"buffer_load_dwordx4 v{V_DMA+q}, s[{S_WT}:{S_WT+3}], s{S_KW} offen lds")
    def X(q): return (f"s_add_u32 m0, s{S_DM}, {HXOFF + q * 4096}", f"buffer_load_dwordx4 v{V_DMA+8+q}, s[{S_X}:{S_X+3}], s{S_KX} offen lds")
    return [W(0), W(1), X(0), W(2), X(1)], [W(3), W(4), X(2), W(5), X(3), W(6)]

def h_reads(half, par):
    xa = V_XA0 if half == 0 else V_XA1
    xs = [(f"ds_read_b128 a[{A_X+20*par+4*b}:{A_X+20*par+4*b+3}], v{xa} offset:{b * 2048}", ("x", par, b)) for b in range(4)]
    ws = []
    for c in range(7):
        r = A_WF + 32 * par + 4 * c
        va = V_WA0 if c % 2 == 0 else V_WA1
        ws.append((f"ds_read_b64_tr_b16 a[{r}:{r+1}], v{va} offset:{32 * half * HP + c * 32}", ("w", par, c)))
        ws.append((f"ds_read_b64_tr_b16 a[{r+2}:{r+3}], v{va} offset:{(32 * half + 8) * HP + c * 32}", ("w", par, c)))
    return ws[:2] + xs + ws[2:]

def h_mfmas(par):
    out = []
    for c in range(7):
        for b in range(4):
            a = ACC + 4 * (b * 7 + c); w = A_WF + 32 * par + 4 * c; x = A_X + 20 * par + 4 * b
            out.append((f"v_mfma_f32_16x16x32_bf16 v[{a}:{a+3}], a[{w}:{w+3}], a[{x}:{x+3}], v[{a}:{a+3}]", {("w", par, c), ("x", par, b)}))
    return out

def h_setup(p):
    L = V_LANE; T = ACC
    p(f"s_mul_i32 s{S_T1}, s{S_I}, 224")
    p(f"s_min_u32 s{S_T1}, s{S_T1}, 1504")
    p(f"s_lshl_b32 s{S_T2}, s{S_T1}, 1")
    lane_bases(p, T, HP, HXOFF)
    p(f"v_lshlrev_b32 v{T+1}, 5, v{T+1}")
    p(f"v_sub_u32 v{V_WB1}, v{V_WB0}, v{T+1}")
    p(f"v_add_u32 v{V_WB0}, v{V_WB0}, v{T+1}")
    p(f"s_cmp_ge_u32 s{S_W}, 2")
    p("s_cselect_b64 vcc, -1, 0")
    p(f"v_add_u32 v{T}, {7 * 32}, v{V_WB0}")
    p(f"v_add_u32 v{T+1}, {7 * 32}, v{V_WB1}")
    p(f"v_cndmask_b32 v{V_WB0}, v{V_WB0}, v{T+1}, vcc")
    p(f"v_cndmask_b32 v{V_WB1}, v{V_WB1}, v{T}, vcc")
    p(f"s_and_b32 s{S_T0}, s{S_W}, 1")
    p(f"s_lshl_b32 s{S_T0}, s{S_T0}, 13")
    p(f"v_add_u32 v{V_XB0}, s{S_T0}, v{V_XB0}")
    p(f"v_add_u32 v{V_XB1}, s{S_T0}, v{V_XB1}")
    p(f"s_lshl_b32 s{S_T0}, s{S_W}, 6")
    p(f"v_add_u32 v{T+8}, s{S_T0}, v{L}")
    for q in range(7):
        if q: p(f"v_add_u32 v{T+8}, 256, v{T+8}")
        div_const(p, T + 1, T + 8, 28, 1791)
        p(f"v_mul_u32_u24 v{T+2}, 28, v{T+1}")
        p(f"v_sub_u32 v{T+2}, v{T+8}, v{T+2}")
        p(f"v_lshrrev_b32 v{T+3}, 1, v{T+1}")
        p(f"v_and_b32 v{T+3}, 2, v{T+3}")
        p(f"v_xor_b32 v{T+2}, v{T+2}, v{T+3}")
        swap23(p, T + 3, T + 1, T + 4, 0x33)
        p(f"v_mul_u32_u24 v{T+3}, {F * 2}, v{T+3}")
        p(f"v_lshl_add_u32 v{T+3}, v{T+2}, 4, v{T+3}")
        p(f"v_add_u32 v{V_DMA+q}, s{S_T2}, v{T+3}")
    p(f"s_lshl_b32 s{S_T0}, s{S_J}, 7")
    p(f"s_lshl_b32 s{S_T1}, s{S_W}, 3")
    p(f"s_add_u32 s{S_T0}, s{S_T0}, s{S_T1}")
    p(f"s_mul_i32 s{S_T0}, s{S_T0}, 1280")
    x_dma_lane(p, V_DMA + 8, T, S_T0)
    for q in range(1, 4): p(f"v_add_u32 v{V_DMA+8+q}, {q * 32 * 1280}, v{V_DMA+8}")

S_RU, S_RKS, S_RC = 92, 93, 94
V_RPL = 220
S_RPB = 74
def repack_address(p):
    L = V_LANE; T = V_RPL
    p(f"s_lshl_b32 s{S_T0}, s{S_J}, 3")
    p(f"s_add_u32 s{S_T0}, s{S_T0}, s{S_I}")
    p(f"s_mul_i32 s{S_RU}, s{S_T0}, 3")
    p(f"s_add_u32 s{S_RU}, s{S_RU}, s{S_W}")
    p(f"s_cmp_eq_u32 s{S_W}, 3")
    p(f"s_cselect_b32 s{S_RU}, 999, s{S_RU}")
    p(f"s_mul_hi_u32 s{S_RKS}, s{S_RU}, {-(-(1 << 32) // 5)}")
    p(f"s_mul_i32 s{S_T0}, s{S_RKS}, 5")
    p(f"s_sub_u32 s{S_RC}, s{S_RU}, s{S_T0}")
    p(f"s_cmp_lt_u32 s{S_RKS}, {KS_H}")
    p(f"s_cselect_b32 s{S_FX}, s{P_W2}, s{P_WO}")
    p(f"s_cselect_b32 s{S_FX+1}, s{P_W2+1}, s{P_WO+1}")
    p(f"s_cselect_b32 s{S_T0}, 0, {KS_H}")
    p(f"s_mov_b32 s{S_T1}, {D * D * 2}")
    p(f"s_cselect_b32 s{S_FX+2}, {F * D * 2}, s{S_T1}")
    p(f"s_and_b32 s{S_FX+1}, s{S_FX+1}, 0xffff")
    p(f"s_mov_b32 s{S_FX+3}, 0x20000")
    p(f"s_sub_u32 s{S_T0}, s{S_RKS}, s{S_T0}")
    p(f"s_mul_i32 s{S_T0}, s{S_T0}, {32 * 1280}")
    p(f"s_lshl_b32 s{S_T1}, s{S_RC}, 8")
    p(f"s_add_u32 s{S_T2}, s{S_T0}, s{S_T1}")
    p(f"s_mov_b32 s{S_RPB}, s{S_T2}")
    p(f"v_lshrrev_b32 v2, 4, v{L}")
    p(f"v_lshlrev_b32 v{T}, 1, v2")
    p(f"v_xor_b32 v{T}, v{T}, v{L}")
    p(f"v_and_b32 v{T}, 15, v{T}")
    p(f"v_xor_b32 v{T+1}, 8, v{T}")
    p(f"v_mul_u32_u24 v2, 1280, v2")
    p(f"v_add_u32 v2, s{S_T2}, v2")
    p(f"v_lshl_add_u32 v{T}, v{T}, 4, v2")
    p(f"v_lshl_add_u32 v{T+1}, v{T+1}, 4, v2")

def repack_warm(p):
    L = V_LANE
    p(f"v_lshrrev_b32 v2, 1, v{L}")
    p(f"v_mul_u32_u24 v2, 1280, v2")
    p(f"v_and_b32 v3, 1, v{L}")
    p(f"v_lshl_add_u32 v2, v3, 7, v2")
    p(f"v_add_u32 v2, s{S_RPB}, v2")
    p(f"s_cmp_lt_u32 s{S_RU}, {KS_T * 5}")
    p("s_cselect_b64 vcc, -1, 0")
    p("v_cndmask_b32 v2, -1, v2, vcc")
    p(f"buffer_load_dword v160, v2, s[{S_FX}:{S_FX+3}], 0 offen")

def repack_issue(p, tag):
    T = V_RPL
    p(f"s_cmp_ge_u32 s{S_RU}, {KS_T * 5}")
    p(f"s_cbranch_scc1 L_rp_noissue{tag}")
    p(f"s_lshl_b32 s{S_T1}, s{S_W}, 13")
    p(f"s_add_u32 s{S_T1}, s{S_T1}, {RP_LDS}")
    for t in range(8):
        p(f"s_add_u32 m0, s{S_T1}, {t * 1024}")
        p(f"s_mov_b32 s{S_T3}, {t * 4 * 1280}")
        p(f"buffer_load_dwordx4 v{T+(t&1)}, s[{S_FX}:{S_FX+3}], s{S_T3} offen lds")
    p.label(f"L_rp_noissue{tag}")

V_RPA, V_RPS = 216, 219
S_RPO = 91
def repack_prepare(p):
    L = V_LANE; T = V_RPA
    p(f"v_lshrrev_b32 v{T}, 2, v{L}")
    p(f"v_and_b32 v{T+1}, 7, v{T}")
    p(f"v_lshlrev_b32 v{T+1}, 5, v{T+1}")
    p(f"v_lshl_add_u32 v{T}, v{T}, 8, v{T+1}")
    p(f"v_and_b32 v{T+1}, 3, v{L}")
    p(f"v_lshl_add_u32 v{T}, v{T+1}, 3, v{T}")
    p(f"s_lshl_b32 s{S_T1}, s{S_W}, 13")
    p(f"s_add_u32 s{S_T1}, s{S_T1}, {RP_LDS}")
    p(f"v_add_u32 v{T}, s{S_T1}, v{T}")
    p(f"v_lshlrev_b32 v{V_RPS}, 4, v{L}")
    p(f"s_mul_i32 s{S_RPO}, s{S_RKS}, 40")
    p(f"s_lshl_b32 s{S_T0}, s{S_RC}, 3")
    p(f"s_add_u32 s{S_RPO}, s{S_RPO}, s{S_T0}")
    p(f"s_lshl_b32 s{S_RPO}, s{S_RPO}, 10")

def repack_finish(p, tag):
    T = V_RPA; FR = 224
    p(f"s_cmp_ge_u32 s{S_RU}, {KS_T * 5}")
    p(f"s_cbranch_scc1 L_rp_nofin{tag}")
    for batch in range(2):
        for k in range(4):
            cb8 = 4 * batch + k
            p(f"v_xor_b32 v{T+1+(k&1)}, {cb8 * 32}, v{T}")
            p(f"ds_read_b64_tr_b16 v[{FR+4*k}:{FR+4*k+1}], v{T+1+(k&1)}")
            p(f"ds_read_b64_tr_b16 v[{FR+4*k+2}:{FR+4*k+3}], v{T+1+(k&1)} offset:{16 * 256}")
        for k in range(4):
            p(f"s_waitcnt lgkmcnt({2 * (3 - k)})")
            off = f" offset:{k * 1024}" if k else ""
            p(f"buffer_store_dwordx4 v[{FR+4*k}:{FR+4*k+3}], v{V_RPS}, s[{S_WP}:{S_WP+3}], s{S_RPO} offen{off} sc1")
        if batch == 0: p(f"s_add_u32 s{S_RPO}, s{S_RPO}, 4096")
    p.label(f"L_rp_nofin{tag}")

SIDE_LDS = RP_LDS + 3 * 8192
def h_side_issue(p, tag):
    L = V_LANE; T = 216
    p(f"s_cmp_lg_u32 s{S_W}, 3")
    p(f"s_cbranch_scc1 L_side_skip{tag}")
    p(f"v_lshlrev_b32 v{T}, 4, v{L}")
    p(f"s_mov_b32 m0, {SIDE_LDS}")
    p(f"v_add_u32 v{T+1}, 1024, v{T}")
    p(f"buffer_load_dwordx4 v{T}, s[{S_AUX2}:{S_AUX2+3}], 0 offen lds")
    p(f"s_mov_b32 m0, {SIDE_LDS + 1024}")
    p(f"v_add_u32 v{T+2}, s{S_FD}, v{T}")
    p(f"buffer_load_dwordx4 v{T+1}, s[{S_AUX2}:{S_AUX2+3}], 0 offen lds")
    p(f"s_mov_b32 m0, {SIDE_LDS + 2048}")
    p("s_nop 0")
    p(f"buffer_load_dwordx4 v{T+2}, s[{S_AUX}:{S_AUX+3}], 0 offen lds")
    p.label(f"L_side_skip{tag}")

def h_gate_issue(p):
    L = V_LANE; T = V_T
    p(f"s_lshl_b32 s{S_T0}, s{S_J}, 7")
    p(f"s_lshl_b32 s{S_T1}, s{S_I}, 4")
    p(f"s_add_u32 s{S_T0}, s{S_T0}, s{S_T1}")
    p(f"s_lshl_b32 s{S_T1}, s{S_W}, 2")
    p(f"s_add_u32 s{S_T0}, s{S_T0}, s{S_T1}")
    p(f"v_lshrrev_b32 v{T}, 4, v{L}")
    p(f"v_add_u32 v{T+6}, s{S_T0}, v{T}")
    p(f"v_mul_u32_u24 v{T}, 1280, v{T+6}")
    p(f"v_and_b32 v{T+1}, 15, v{L}")
    p(f"v_lshlrev_b32 v{T+1}, 4, v{T+1}")
    p(f"v_add_u32 v{T}, v{T}, v{T+1}")
    for t in range(5):
        p(f"buffer_load_dwordx4 v[{GX+4*t}:{GX+4*t+3}], v{T}, s[{S_AUX2}:{S_AUX2+3}], 0 offen offset:{256 * t}")
    p(f"v_add_u32 v{T+1}, {SIDE_LDS}, v{T+1}")
    for t in range(5):
        p(f"ds_read_b128 v[{GW_+4*t}:{GW_+4*t+3}], v{T+1} offset:{256 * t}")
    p(f"s_lshr_b32 s{S_T0}, s{S_W}, 1")
    p(f"s_mul_i32 s{S_T0}, s{S_T0}, 224")
    p(f"s_add_u32 s{S_T0}, s{S_T0}, {SIDE_LDS + 2048}")
    p(f"v_lshrrev_b32 v{T}, 4, v{L}")
    p(f"v_lshl_add_u32 v{T}, v{T}, 3, s{S_T0}")
    for c in range(7):
        p(f"ds_read_b64 v[{B1+2*c}:{B1+2*c+1}], v{T} offset:{32 * c}")

def h_gate(p, gsrd):
    L = V_LANE; T = V_T + 2
    p(f"v_mov_b32 v{T}, 0")
    p(f"v_mov_b32 v{T+1}, 0")
    for t in range(10):
        p(f"v_dot2_f32_bf16 v{T}, v{GX+t}, v{GW_+t}, v{T}")
        p(f"v_dot2_f32_bf16 v{T+1}, v{GX+10+t}, v{GW_+10+t}, v{T+1}")
    p(f"v_add_f32 v{T}, v{T}, v{T+1}")
    for rot in (8, 4, 2, 1):
        p(f"v_add_f32_dpp v{T}, v{T}, v{T} row_ror:{rot} row_mask:0xf bank_mask:0xf")
    p(f"v_mul_f32 v{T}, 0xbfb8aa3b, v{T}")
    p(f"v_exp_f32 v{T}, v{T}")
    p(f"v_add_f32 v{T}, 1.0, v{T}")
    p(f"v_rcp_f32 v{T}, v{T}")
    p(f"v_lshlrev_b32 v{T+1}, 2, v{V_T+6}")
    p(f"v_and_b32 v{T+2}, 15, v{L}")
    p(f"v_cmp_eq_u32 vcc, 0, v{T+2}")
    p(f"v_cndmask_b32 v{T+1}, -1, v{T+1}, vcc")
    p(f"buffer_store_dword v{T}, v{T+1}, s[{gsrd}:{gsrd+3}], 0 offen sc1")

def h_epilogue(p, ch, n0_sgpr):
    L = V_LANE; T = V_T
    BF = 128
    for c in range(7):
        lo, hi = B1 + 2 * c, B1 + 2 * c + 1; r = BF + 4 * c
        p(f"v_lshlrev_b32 v{r}, 16, v{lo}"); p(f"v_and_b32 v{r+1}, 0xffff0000, v{lo}")
        p(f"v_lshlrev_b32 v{r+2}, 16, v{hi}"); p(f"v_and_b32 v{r+3}, 0xffff0000, v{hi}")
    p(f"s_lshl_b32 s{S_T0}, s{S_J}, 3")
    p(f"s_and_b32 s{S_T1}, s{S_W}, 1")
    p(f"s_lshl_b32 s{S_T1}, s{S_T1}, 2")
    p(f"s_add_u32 s{S_T0}, s{S_T0}, s{S_T1}")
    p(f"s_mul_i32 s{S_T0}, s{S_T0}, {KS_T * 1024}")
    p(f"s_lshl_b32 s{S_T1}, s{n0_sgpr}, 4")
    p(f"s_add_u32 s{S_T0}, s{S_T0}, s{S_T1}")
    p(f"v_lshlrev_b32 v{T}, 4, v{L}")
    p(f"v_add_u32 v{T}, s{S_T0}, v{T}")
    PK = 214
    for b in range(4):
        if b: p(f"v_add_u32 v{T}, {KS_T * 1024}, v{T}")
        p(f"v_add_u32 v{T+1}, 4096, v{T}")
        for c in range(7):
            a = ACC + 4 * (b * 7 + c); bf = BF + 4 * c
            for h in (0, 2): p(f"v_pk_add_f32 v[{a+h}:{a+h+1}], v[{a+h}:{a+h+1}], v[{bf+h}:{bf+h+1}]")
            for r in range(4): p(f"v_max_f32 v{a+r}, 0, v{a+r}")
            for h in (0, 2): p(f"v_pk_mul_f32 v[{a+h}:{a+h+1}], v[{a+h}:{a+h+1}], v[{a+h}:{a+h+1}]")
            cbl = 7 * ch + c
            half = cbl & 1; ks = cbl >> 1
            d = PK + 4 * ((b * 4 + (ks - (3 if ch else 0))) % 6) + 2 * half
            p(f"v_cvt_pk_bf16_f32 v{d}, v{a}, v{a+1}")
            p(f"v_cvt_pk_bf16_f32 v{d+1}, v{a+2}, v{a+3}")
            va = T + (ks >> 2); off = (ks & 3) * 1024
            single = (ch == 0 and c == 6) or (ch == 1 and c == 0)
            if single:
                p(f"buffer_store_dwordx2 v[{d}:{d+1}], v{va}, s[{S_AF}:{S_AF+3}], 0 offen offset:{off + 8 * half} sc1")
            elif half == 1:
                p(f"buffer_store_dwordx4 v[{d-2}:{d+1}], v{va}, s[{S_AF}:{S_AF+3}], 0 offen offset:{off} sc1")
```

```python
from fz_common import *

P2SC = '' if 'p2plain' in EXP else 'sc1'
NSTEP, NH = 19, 14
S_AFD, S_WPD, S_GS, S_B2S = 16, 20, 24, 36
POLL_ISSUE, POLL_CHECK = 5, 9
V_POLL = 50

def acc(base, b, cb): return base + 4 * (b * 5 + cb)

def p2_addr_setup(p):
    L = V_LANE
    p(f"s_mul_i32 s{S_T0}, s{S_N2}, 5120")
    p(f"s_mul_i32 s{S_T1}, s{S_W}, 40960")
    p(f"s_add_u32 s{S_T0}, s{S_T0}, s{S_T1}")
    p(f"v_lshlrev_b32 v{V_PW}, 4, v{L}")
    p(f"v_add_u32 v{V_PA}, 0, v{V_PW}")
    p(f"v_add_u32 v{V_PW}, s{S_T0}, v{V_PW}")
    p(f"v_add_u32 v{V_PW+1}, 4096, v{V_PW}")
    p(f"s_mul_i32 s{S_T0}, s{S_R2}, {4 * KS_T * 1024}")
    p(f"s_lshl_b32 s{S_T1}, s{S_W}, 10")
    p(f"s_add_u32 s{S_T0}, s{S_T0}, s{S_T1}")
    p(f"v_add_u32 v{V_PA}, s{S_T0}, v{V_PA}")
    for b in range(1, 4): p(f"v_add_u32 v{V_PA+b}, {b * KS_T * 1024}, v{V_PA}")

def step_ks(m): return 4 * m if m < NH else KS_H + 4 * (m - NH)

def w_loads(m):
    sr = S_WPD if m == NH - 1 else S_WP
    pre = f"s_mov_b32 s{S_SW}, {step_ks(m) * 40960}"
    ins = []
    for cb in range(5):
        r = A_WR + 20 * (m % NWR) + 4 * cb
        va, off = (V_PW, cb * 1024) if cb < 4 else (V_PW + 1, 0)
        o = f" offset:{off}" if off else ""
        ins.append(f"buffer_load_dwordx4 a[{r}:{r+3}], v{va}, s[{sr}:{sr+3}], s{S_SW} offen{o} {P2SC}")
    return pre, ins

def a_loads(m):
    sr = S_AFD if m == NH - 1 else S_AF
    pre = f"s_mov_b32 s{S_SA}, {step_ks(m) * 1024}"
    ins = []
    for b in range(4):
        r = A_AR + 16 * (m % NAR) + 4 * b
        ins.append(f"buffer_load_dwordx4 a[{r}:{r+3}], v{V_PA+b}, s[{sr}:{sr+3}], s{S_SA} offen {P2SC}")
    return pre, ins

NLD = 0 if "nolds" in EXP else 7
S_LWB = 58
V_LWR = 242
def lds_steps(): return range(NWR, NWR + NLD)

def lds_setup(p):
    L = V_LANE
    p(f"s_mul_i32 s{S_LWB}, s{S_W}, {7 * 5120}")
    p(f"v_lshlrev_b32 v{V_LWR}, 4, v{L}")
    p(f"v_add_u32 v{V_LWR}, s{S_LWB}, v{V_LWR}")

def lds_prefetch_list():
    out = []
    for m in lds_steps():
        sr = S_WPD if m == NH - 1 else S_WP
        slot = (m - NWR) * 5120
        for cb in range(5):
            g = []
            if cb == 0: g += [f"s_mov_b32 s{S_SW}, {step_ks(m) * 40960}", f"s_add_u32 m0, s{S_LWB}, {slot}", "s_nop 0"]
            if cb == 4: g += [f"s_add_u32 m0, s{S_LWB}, {slot + 4096}", "s_nop 0"]
            va, off = (V_PW, cb * 1024) if cb < 4 else (V_PW + 1, 0)
            o = f" offset:{off}" if off else ""
            g.append(f"buffer_load_dwordx4 v{va}, s[{sr}:{sr+3}], s{S_SW} offen{o} {P2SC} lds")
            out.append(g)
    return out

def lds_reads(m):
    slot = (m - NWR) * 5120
    return [f"ds_read_b128 a[{A_WR+20*(m%NWR)+4*cb}:{A_WR+20*(m%NWR)+4*cb+3}], v{V_LWR} offset:{slot + cb * 1024}" for cb in range(5)]

def prefetch_list():
    out = []
    for m in range(NWR):
        pre, ins = w_loads(m)
        out.append([pre, ins[0]])
        out += [[x] for x in ins[1:]]
    return out

def p2_empty_srds(p):
    for dst, src, nb in ((S_AFD, S_AF, AF_BYTES), (S_WPD, S_WP, WP_BYTES)):
        p(f"s_mov_b32 s{dst}, s{src}"); p(f"s_mov_b32 s{dst+1}, s{src+1}")
        p(f"s_cmp_lt_u32 s{S_W}, 2")
        p(f"s_cselect_b32 s{dst+2}, {nb}, 0")
        p(f"s_mov_b32 s{dst+3}, 0x20000")

V_1G = 52
V_GP = 4
BF = 30
SIG_STEP = 2

def p2_zero(p):
    for r in range(ACCB, ACCA + 80, 2): p(f"v_mov_b64 v[{r}:{r+1}], 0")

def p2_main(p, n_old_stores):
    L = V_LANE
    vq = VmQ()
    for k in range(n_old_stores): vq.issue("OST")
    for m in range(2):
        pre, ins = a_loads(m); p(pre)
        for x in ins: p(x); vq.issue(("A", m))
    p(f"v_and_b32 v2, 15, v{L}")
    p(f"s_lshl_b32 s{S_T0}, s{S_R2}, 8")
    p(f"v_lshl_add_u32 v{V_1G}, v2, 2, s{S_T0}")
    p(f"v_lshrrev_b32 v3, 4, v{L}")
    p(f"s_mul_i32 s{S_T0}, s{S_N2}, 160")
    p(f"v_lshl_add_u32 v{V_1G+1}, v3, 3, s{S_T0}")
    if "mid" not in EXP and "its" not in EXP and "rpst" not in EXP: fstamp(p, 4)
    for m in range(NSTEP):
        base = ACCB if m < NH else ACCA
        need = [("A", m), ("W", m)]
        if m == POLL_CHECK: need.append("POLL")
        if m == NH: need += ["G", "B2"]
        n = vq.count_for(need)
        lg = " lgkmcnt(0)" if (m - 1) >= 1 and (m - 1 + NWR - 1) in lds_steps() else ""
        if n is not None:
            p(f"s_waitcnt vmcnt({n}){lg}"); vq.retire(n)
        elif lg: p(f"s_waitcnt{lg}")
        if m == SIG_STEP:
            n = vq.count_for(["OST"])
            p(f"s_cmp_lg_u32 s{S_ROLE}, 0")
            p("s_cbranch_scc1 L_p2_nosig")
            if n is not None: p(f"s_waitcnt vmcnt({n})")
            p("s_barrier")
            p(f"s_lshl_b32 s{S_T0}, s{S_J}, 2")
            p(f"s_add_u32 s{S_T0}, s{S_T0}, {DBG_Q * 4}")
            signal(p, f"s{S_T0}", "L_q_sig")
            p.label("L_p2_nosig")
        if m == POLL_CHECK:
            p(f"v_readfirstlane_b32 s{S_T0}, v{V_POLL}")
            p("s_nop 3")
            p(f"s_cmp_ge_u32 s{S_T0}, 8")
            p("s_cbranch_scc1 L_p2_o_ready")
            p(f"s_lshl_b32 s{S_T1}, s{S_R2}, 1")
            p(f"s_and_b32 s{S_T1}, s{S_T1}, 0xfffffffc")
            p(f"s_add_u32 s{S_T1}, s{S_T1}, {DBG_Q * 4}")
            poll_loop(p, f"s{S_T1}", 8, "L_p2_o_poll")
            p.label("L_p2_o_ready")
        if m == NH and "mid" not in EXP and "its" not in EXP and "rpst" not in EXP: fstamp(p, 5)
        mf = []
        for cb in range(5):
            for b in range(4):
                a = acc(base, b, cb); w = A_WR + 20 * (m % NWR) + 4 * cb; x = A_AR + 16 * (m % NAR) + 4 * b
                mf.append(f"v_mfma_f32_16x16x32_bf16 v[{a}:{a+3}], a[{w}:{w+3}], a[{x}:{x+3}], v[{a}:{a+3}]")
        loads = []
        steps_a = [2, 3, 4, 5] if m == 0 else ([m + NAR - 1] if m + NAR - 1 < NSTEP else [])
        for mm in steps_a:
            pre, ins = a_loads(mm)
            loads += [(pre if k == 0 else None, x, ("A", mm)) for k, x in enumerate(ins)]
        dsr = []
        if m >= 1 and m + NWR - 1 < NSTEP:
            mw = m + NWR - 1
            if mw in lds_steps(): dsr = lds_reads(mw)
            else:
                pre, ins = w_loads(mw)
                loads += [(pre if k == 0 else None, x, ("W", mw)) for k, x in enumerate(ins)]
        if m == 2:
            for b in range(4):
                loads.append((None, f"buffer_load_dword v{V_G+b}, v{V_1G}, s[{S_GS}:{S_GS+3}], 0 offen offset:{64 * b} sc1", "G"))
            for cb in range(5):
                loads.append((None, f"buffer_load_dwordx2 v[{V_B2+2*cb}:{V_B2+2*cb+1}], v{V_1G+1}, s[{S_B2S}:{S_B2S+3}], 0 offen offset:{32 * cb}", "B2"))
        if m == POLL_ISSUE:
            p(f"s_lshl_b32 s{S_T1}, s{S_R2}, 1")
            p(f"s_and_b32 s{S_T1}, s{S_T1}, 0xfffffffc")
            p(f"s_add_u32 s{S_T1}, s{S_T1}, {DBG_Q * 4}")
            p(f"v_mov_b32 v2, s{S_T1}")
            loads.append((None, f"global_load_dword v{V_POLL}, v2, s[{S_DBG}:{S_DBG+1}] sc1", "POLL"))
        gaps = [[] for _ in range(20)]
        for k, (pre, x, tag) in enumerate(loads):
            g = min(19, 1 + int(k * 18 / max(1, len(loads))))
            if pre: gaps[g - 1].append((pre, None))
            gaps[g].append((x, tag))
        for k, t in enumerate(dsr):
            free = [g for g in range(2 + 3 * k, 20) if not gaps[g]]
            gaps[free[0] if free else 19].append((t, None))
        val = []
        unp = []
        for cb in range(5):
            lo, hi = V_B2 + 2 * cb, V_B2 + 2 * cb + 1; r = BF + 4 * cb
            unp += [f"v_lshlrev_b32 v{r}, 16, v{lo}", f"v_and_b32 v{r+1}, 0xffff0000, v{lo}",
                    f"v_lshlrev_b32 v{r+2}, 16, v{hi}", f"v_and_b32 v{r+3}, 0xffff0000, v{hi}"]
        if m == NH:
            for b in range(4): val += [f"v_sub_f32 v{V_1G+2*b}, 1.0, v{V_G+b}", f"v_sub_f32 v{V_1G+2*b+1}, 1.0, v{V_G+b}"]
            val += unp[:12]
        if m == NH - 2:
            pass
        if NH < m <= NH + 4:
            b = m - NH - 1
            g1 = V_1G + 2 * b
            for cb in range(5):
                for h in range(4):
                    B_ = acc(ACCB, b, cb) + h
                    val.append(f"v_mul_f32 v{B_}, v{B_}, v{g1}")
        if m == NH:
            val += unp[12:]
            for bb in range(4): val += [f"v_mov_b32 v{V_GP+2*bb}, v{V_G+bb}", f"v_mov_b32 v{V_GP+2*bb+1}, v{V_G+bb}"]
        for k, t in enumerate(val):
            gaps[k % 20].append((t, None))
        for k in range(20):
            p(mf[k])
            for x, tag in gaps[k]:
                p(x)
                if tag: vq.issue(tag)
    return vq

def p2_final(p):
    L = V_LANE; T = 12
    for b in range(4):
        g = V_GP + 2 * b
        for cb in range(5):
            for h in (0, 2):
                A_ = acc(ACCA, b, cb) + h; B_ = acc(ACCB, b, cb) + h
                p(f"v_pk_fma_f32 v[{A_}:{A_+1}], v[{A_}:{A_+1}], v[{g}:{g+1}], v[{B_}:{B_+1}]")
    p("s_barrier")
    p(f"v_lshlrev_b32 v{T+2}, 4, v{L}")
    p(f"s_mul_i32 s{S_T0}, s{S_W}, 5120")
    p(f"v_add_u32 v{T+2}, s{S_T0}, v{T+2}")
    p(f"v_add_u32 v{T+3}, 40960, v{T+2}")
    for w in range(4):
        p(f"s_cmp_lg_u32 s{S_W}, {w}")
        p(f"s_cbranch_scc1 L_p2_red_skip{w}")
        for k in range(1, 4):
            d = (w + k) & 3
            for cb in range(5):
                a = acc(ACCA, d, cb)
                p(f"ds_write_b128 v{T+2+(d>>1)}, v[{a}:{a+3}] offset:{(d & 1) * 20480 + cb * 1024}")
        g1 = V_1G + 2 * w
        for cb in range(5):
            a = acc(ACCA, w, cb); bd = acc(ACCB, 0, cb); r = BF + 4 * cb
            for h in (0, 2):
                p(f"v_pk_fma_f32 v[{bd+h}:{bd+h+1}], v[{r+h}:{r+h+1}], v[{g1}:{g1+1}], v[{a+h}:{a+h+1}]")
        if w < 3: p("s_branch L_p2_red_done")
        p.label(f"L_p2_red_skip{w}")
    p.label("L_p2_red_done")
    p(f"v_lshlrev_b32 v{T+2}, 4, v{L}")
    p(f"s_mul_i32 s{S_T0}, s{S_W}, 20480")
    p(f"v_add_u32 v{T+2}, s{S_T0}, v{T+2}")
    for k in range(1, 4):
        p(f"s_add_u32 s{S_T1}, s{S_W}, {k}")
        p(f"s_and_b32 s{S_T1}, s{S_T1}, 3")
        p(f"s_mul_i32 s{S_T1}, s{S_T1}, 5120")
        p(f"v_add_u32 v{T+2+k}, s{S_T1}, v{T+2}")
    TR = 81920
    p(f"v_and_b32 v{T}, 15, v{L}")
    p(f"v_mul_u32_u24 v{T}, 176, v{T}")
    p(f"v_lshrrev_b32 v{T+1}, 4, v{L}")
    p(f"v_lshl_add_u32 v{T}, v{T+1}, 3, v{T}")
    p(f"s_mul_i32 s{S_T0}, s{S_W}, 2816")
    p(f"s_add_u32 s{S_T0}, s{S_T0}, {TR}")
    p(f"v_add_u32 v{T}, s{S_T0}, v{T}")
    p(f"s_lshl_b32 s{S_T1}, s{S_R2}, 6")
    p(f"s_lshl_b32 s{S_SA}, s{S_W}, 4")
    p(f"s_add_u32 s{S_T1}, s{S_T1}, s{S_SA}")
    p(f"s_mul_i32 s{S_T1}, s{S_T1}, 1280")
    p(f"s_mul_i32 s{S_SA}, s{S_N2}, 160")
    p(f"s_add_u32 s{S_T1}, s{S_T1}, s{S_SA}")
    for j in range(3):
        p(f"v_add_u32 v2, {64 * j}, v{L}")
        div_const(p, 3, 2, 10, 191)
        p(f"v_mul_u32_u24 v28, 10, v3")
        p(f"v_sub_u32 v28, v2, v28")
        p(f"v_mul_u32_u24 v{20+j}, 176, v3")
        p(f"v_lshl_add_u32 v{20+j}, v28, 4, v{20+j}")
        p(f"v_add_u32 v{20+j}, s{S_T0}, v{20+j}")
        p(f"v_mul_u32_u24 v3, 1280, v3")
        p(f"v_lshl_add_u32 v3, v28, 4, v3")
        p(f"v_add_u32 v{24+j}, s{S_T1}, v3")
        if j == 2:
            p(f"v_cmp_gt_u32 vcc, 160, v2")
            p(f"v_cndmask_b32 v{24+j}, -1, v{24+j}, vcc")
            p(f"v_cndmask_b32 v{20+j}, 0, v{20+j}, vcc")
    p("s_waitcnt lgkmcnt(0)")
    p("s_barrier")
    for k in range(1, 4):
        for cb in range(5):
            r = ACCA + 4 * ((k - 1) * 5 + cb)
            p(f"ds_read_b128 v[{r}:{r+3}], v{T+2+k} offset:{cb * 1024}")
    for k in range(1, 4):
        p(f"s_waitcnt lgkmcnt({5 * (3 - k)})")
        for cb in range(5):
            r = ACCA + 4 * ((k - 1) * 5 + cb); o = acc(ACCB, 0, cb)
            for h in (0, 2): p(f"v_pk_add_f32 v[{o+h}:{o+h+1}], v[{o+h}:{o+h+1}], v[{r+h}:{r+h+1}]")
    for cb in range(5):
        o = acc(ACCB, 0, cb); r = BF + 2 * cb
        p(f"v_cvt_pk_bf16_f32 v{r}, v{o}, v{o+1}")
        p(f"v_cvt_pk_bf16_f32 v{r+1}, v{o+2}, v{o+3}")
        p(f"ds_write_b64 v{T}, v[{r}:{r+1}] offset:{32 * cb}")
    p("s_waitcnt lgkmcnt(0)")
    for j in range(3):
        r = ACCA + 4 * j
        p(f"ds_read_b128 v[{r}:{r+3}], v{20+j}")
    for j in range(3):
        r = ACCA + 4 * j
        p(f"s_waitcnt lgkmcnt({2 - j})")
        p(f"buffer_store_dwordx4 v[{r}:{r+3}], v{24+j}, s[{S_OUT}:{S_OUT+3}], 0 offen")
```

```python
from fz_common import *

V_PFD = 160
def pf_code(p, label_begin, nbytes):
    L = V_LANE
    p(f"s_cmp_lg_u32 s{S_W}, 0")
    p(f"s_cbranch_scc1 L_pfc_skip")
    p("s_getpc_b64 s[4:5]")
    p.label("L_pfc_pc")
    p(f"s_sub_u32 s4, s4, L_pfc_pc-{label_begin}")
    p("s_subb_u32 s5, s5, 0")
    p("s_lshr_b32 s6, s2, 3")
    p(f"s_lshl_b32 s6, s6, 10")
    p(f"v_lshlrev_b32 v2, 7, v{L}")
    p(f"v_add_u32 v2, s6, v2")
    p(f"v_cmp_gt_u32 vcc, 8, v{L}")
    p(f"v_cndmask_b32 v2, -1, v2, vcc")
    p(f"v_cmp_gt_u32 vcc, {nbytes}, v2")
    p("s_nop 4")
    p("s_and_saveexec_b64 s[6:7], vcc")
    p("s_cbranch_execz L_pfc_none")
    p(f"global_load_dword v{V_PFD}, v2, s[4:5]")
    p.label("L_pfc_none")
    p("s_mov_b64 exec, s[6:7]")
    p.label("L_pfc_skip")

V_PF = 215
PF_DIST = 5
def pf_setup(p, role, srd, s_step, n0_sgpr=None):
    L = V_LANE; T = ACC
    wl = 6 if role == 0 else 4
    wp = 3 * D * 2 if role == 0 else F * 2
    nrows = 144 if role == 0 else 128
    p(f"s_and_b32 s{S_T0}, s{S_W}, 1")
    p(f"s_mul_i32 s{S_T1}, s{S_T0}, {4 * wl}")
    p(f"v_add_u32 v{T}, s{S_T1}, v{L}")
    if role == 0:
        div_const(p, T + 1, T, 6, 127)
        p(f"v_mul_u32_u24 v{T+2}, 6, v{T+1}")
        p(f"v_sub_u32 v{T+2}, v{T}, v{T+2}")
        p(f"v_lshrrev_b32 v{T+3}, 1, v{T+2}")
        p(f"v_mul_u32_u24 v{T+3}, 1280, v{T+3}")
        p(f"v_and_b32 v{T+2}, 1, v{T+2}")
        p(f"v_lshl_add_u32 v{T+3}, v{T+2}, 7, v{T+3}")
        p(f"s_mul_i32 s{S_T2}, s{S_I}, 160")
    else:
        p(f"v_lshrrev_b32 v{T+1}, 2, v{T}")
        p(f"v_and_b32 v{T+2}, 3, v{T}")
        p(f"v_lshlrev_b32 v{T+3}, 7, v{T+2}")
        p(f"s_mov_b32 s{S_T2}, s{n0_sgpr}")
    p(f"s_and_b32 s{S_T2}, s{S_T2}, 0xffffff80")
    p(f"s_and_b32 s{S_T1}, s{S_J}, 7")
    p(f"s_mul_i32 s{S_T1}, s{S_T1}, {wp}")
    p(f"s_add_u32 s{S_T1}, s{S_T1}, s{S_T2}")
    p(f"v_mul_u32_u24 v{T+1}, {8 * wp}, v{T+1}")
    p(f"v_add3_u32 v{T+4}, v{T+1}, v{T+3}, s{S_T1}")
    p(f"v_cmp_gt_u32 vcc, {4 * wl}, v{L}")
    p(f"v_cndmask_b32 v{T+4}, -1, v{T+4}, vcc")
    p(f"s_mul_i32 s{S_T1}, s{S_T0}, {nrows // 8}")
    p(f"v_add_u32 v{T}, s{S_T1}, v{L}")
    p(f"s_lshl_b32 s{S_T1}, s{S_J}, 7")
    p(f"s_and_b32 s{S_T2}, s{S_I}, 3")
    p(f"s_add_u32 s{S_T1}, s{S_T1}, s{S_T2}")
    if role == 0: p(f"s_sub_u32 s{S_T1}, s{S_T1}, 16")
    p(f"s_mul_i32 s{S_T1}, s{S_T1}, 1280")
    p(f"v_mul_u32_u24 v{T}, {4 * 1280}, v{T}")
    p(f"v_add_u32 v{T}, s{S_T1}, v{T}")
    p(f"v_cmp_gt_u32 vcc, {nrows // 8}, v{L}")
    p(f"v_cndmask_b32 v{T}, -1, v{T}, vcc")
    p(f"s_cmp_ge_u32 s{S_W}, 2")
    p(f"s_cselect_b32 s{srd}, s{S_X}, s{S_WT}")
    p(f"s_cselect_b32 s{srd+1}, s{S_X+1}, s{S_WT+1}")
    p(f"s_cselect_b32 s{srd+2}, s{S_X+2}, s{S_WT+2}")
    p(f"s_mov_b32 s{srd+3}, 0x20000")
    p(f"s_mov_b32 s{S_T1}, {64 * wp}")
    p(f"s_cselect_b32 s{s_step}, 128, s{S_T1}")
    p("s_cselect_b64 vcc, -1, 0")
    p(f"v_cndmask_b32 v{V_PF}, v{T+4}, v{T}, vcc")
    p(f"v_cmp_ne_u32 vcc, -1, v{V_PF}")
    p(f"v_mov_b32 v{V_PF-1}, s{s_step}")
    p(f"v_cndmask_b32 v{V_PF-1}, 0, v{V_PF-1}, vcc")
    p(f"v_lshl_add_u32 v{T}, v{V_PF-1}, 1, v{V_PF-1}")
    p(f"v_add_u32 v{V_PF}, v{V_PF}, v{T}")

def pf_touch(srd):
    return [("v", f"buffer_load_dword v{V_PFD}, v{V_PF}, s[{srd}:{srd+3}], 0 offen"),
            ("a", f"v_add_u32 v{V_PF}, v{V_PF}, v{V_PF-1}")]

def warmup_linear(p, parts):
    L = V_LANE
    n = 0
    for srd, total, nwg, idx in parts:
        per = -(-total // nwg // 1024) * 1024
        ninstr = per // 1024
        p(f"s_mul_i32 s{S_T0}, s{idx}, {per}")
        p(f"s_lshl_b32 s{S_T1}, s{S_W}, 10")
        p(f"s_add_u32 s{S_T0}, s{S_T0}, s{S_T1}")
        p(f"v_lshlrev_b32 v2, 4, v{L}")
        p(f"v_add_u32 v2, s{S_T0}, v2")
        for q in range(-(-ninstr // 4)):
            if q: p("v_add_u32 v2, 4096, v2")
            p(f"buffer_load_dwordx4 v[{WU_DST}:{WU_DST+3}], v2, s[{srd}:{srd+3}], 0 offen")
            n += 1
    return n
WU_DST = 208
```

```python
from fz_common import *
import struct, math, os

QP = 480
XOFF = 64 * QP
STG = XOFF + 144 * 128

def q_cols(ch): return list(range(0, 8)) if ch == 0 else list(range(8, 15))
def q_halo(rh, ch): return {(0, 0): [5, 6], (1, 0): [7], (0, 1): [8, 9, 10, 11], (1, 1): [12, 13, 14]}[(rh, ch)]
def q_acc(ch, b, cb): return ACC + 4 * (b * 8 + q_cols(ch).index(cb))
def q_acc_halo(k): return ACC + 128 + 4 * k

def q_dmas():
    def W(q): return (f"s_add_u32 m0, s{S_DM}, {q * 4096}", f"buffer_load_dwordx4 v{V_DMA+q}, s[{S_WT}:{S_WT+3}], s{S_KW} offen lds")
    def X(q): return (f"s_add_u32 m0, s{S_DM}, {XOFF + q * 4096}", f"buffer_load_dwordx4 v{V_DMA+8+q}, s[{S_X}:{S_X+3}], s{S_KX} offen lds")
    FX = (f"s_add_u32 m0, s{S_DM}, s{S_FD}", f"buffer_load_dwordx4 v{V_DMA+7}, s[{S_FX}:{S_FX+3}], s{S_KF} offen lds")
    return [W(0), W(1), X(0), W(2), X(1), W(3)], [W(4), W(5), X(2), W(6), FX, X(3)]

def stage_offsets(kwstep, flex):
    out = [f"s_mul_i32 s{S_KW}, s{S_T0}, {kwstep}", f"s_lshl_b32 s{S_KX}, s{S_T0}, 7"]
    if flex: out.append(f"s_mul_i32 s{S_KF}, s{S_T0}, s{S_FSTEP}")
    return out

def stage_advance(stg, kwstep, flex):
    return [f"s_add_u32 s{S_DM}, s{S_RD}, s{S_WOFS}", f"s_add_u32 s{S_T0}, s{S_CNT}, {RING}",
            f"s_xor_b32 s{S_T0}, s{S_T0}, s{S_PAR}"] + stage_offsets(kwstep, flex)

def prologue_stage(k, stg, kwstep, flex):
    out = [f"s_xor_b32 s{S_T0}, s{S_PAR}, {k}"] + stage_offsets(kwstep, flex)
    if k: out.append(f"s_add_u32 s{S_DM}, s{S_WOFS}, {k * stg}")
    else: out.append(f"s_mov_b32 s{S_DM}, s{S_WOFS}")
    return out

def read_advance(stg, nw):
    out = [("s", f"s_add_u32 s{S_RD}, s{S_RD}, {stg}"), ("s", f"s_cmp_eq_u32 s{S_RD}, {RING * stg}"),
           ("s", f"s_cselect_b32 s{S_RD}, 0, s{S_RD}")]
    return out + addr_update(nw)

def addr_update(nw):
    out = [("a", f"v_add_u32 v{V_XA0}, s{S_RD}, v{V_XB0}"), ("a", f"v_add_u32 v{V_WA0}, s{S_RD}, v{V_WB0}")]
    if nw == 2: out.append(("a", f"v_add_u32 v{V_WA1}, s{S_RD}, v{V_WB1}"))
    out.append(("a", f"v_add_u32 v{V_XA1}, s{S_RD}, v{V_XB1}"))
    return out

def tail_sizes(flex):
    out = [("s", f"s_cmp_lt_u32 s{S_CNT}, {NSTG - RING}"), ("s", f"s_cselect_b32 s{S_WT+2}, s{S_WSZ}, 0"),
           ("s", f"s_cselect_b32 s{S_X+2}, s{S_XSZ}, 0")]
    if flex: out.append(("s", f"s_cselect_b32 s{S_FX+2}, s{S_FSZ}, 0"))
    return out

def q_reads(rh, ch, half, par):
    xa = V_XA0 if half == 0 else V_XA1
    xs = [(f"ds_read_b128 a[{A_X+20*par+4*b}:{A_X+20*par+4*b+3}], v{xa} offset:{(1 + 4 * rh + b) * 2048}", ("x", par, b)) for b in range(4)]
    xh = (f"ds_read_b128 a[{A_X+20*par+16}:{A_X+20*par+19}], v{xa}", ("x", par, 4))
    ws = []
    for k, cb in enumerate(q_cols(ch)):
        r = A_WF + 32 * par + 4 * k
        ws.append((f"ds_read_b64_tr_b16 a[{r}:{r+1}], v{V_WA0} offset:{32 * half * QP + cb * 32}", ("w", par, k)))
        ws.append((f"ds_read_b64_tr_b16 a[{r+2}:{r+3}], v{V_WA0} offset:{(32 * half + 8) * QP + cb * 32}", ("w", par, k)))
    first_halo = q_cols(ch).index(q_halo(rh, ch)[0])
    out = ws[:2] + xs
    for k in range(1, len(q_cols(ch))):
        if k == max(1, first_halo): out.append(xh)
        out += ws[2 * k:2 * k + 2]
    if xh not in out: out.insert(6, xh)
    return out

def q_mfmas(rh, ch, par):
    out = []; cols = q_cols(ch); halo = q_halo(rh, ch)
    def one(a, cb, xi):
        k = cols.index(cb)
        w = A_WF + 32 * par + 4 * k; x = A_X + 20 * par + 4 * xi
        needs = {("w", par, k), ("x", par, xi)}
        if cb < 10: return (f"v_mfma_f32_16x16x32_bf16 v[{a}:{a+3}], a[{w}:{w+3}], a[{x}:{x+3}], v[{a}:{a+3}]", needs)
        return (f"v_mfma_f32_16x16x32_bf16 v[{a}:{a+3}], a[{x}:{x+3}], a[{w}:{w+3}], v[{a}:{a+3}]", needs)
    for cb in cols:
        for b in range(4): out.append(one(q_acc(ch, b, cb), cb, b))
        if cb in halo: out.append(one(q_acc_halo(halo.index(cb)), cb, 4))
    return out

BAR_AT = int(os.environ.get("BAR_AT", "4"))
def gen_loop(p, label, nd_stage, mf, reads, dmas, stg, kwstep, flex, nw, hook=None, pf=None, wait=None):
    first, second = dmas
    if "nodma" in EXP: first, second = [], []
    if "noread" in EXP: reads = lambda a, b: []
    if "nodma" in EXP: nd_stage = 0
    if pf and "nodma" not in EXP:
        second = second[:3] + [(None, pf[0][1])] + second[3:]
        nd_stage += 1
    p.label(label)
    dsq = [tag for t, tag in reads(0, 0)]
    post = ([pf[1]] if pf and "nodma" not in EXP else []) + [("s", t) for t in stage_advance(stg, kwstep, flex)] + tail_sizes(flex) + read_advance(stg, nw)
    S, spill = schedule_step(mf(0), reads(1, 1), second, post)
    S.emit(p, dsq)
    def barrier_code(pp):
        if wait: wait(pp, nd_stage)
        else: pp(f"s_waitcnt vmcnt({nd_stage}) lgkmcnt(0)")
        if "nobar" not in EXP: pp("s_barrier")
        if hook: hook(pp)
        if "its" in EXP:
            for k, (it, st) in enumerate(((1, 1), (4, 2), (7, 4), (8, 5), (9, 6))):
                pp(f"s_cmp_lg_u32 s{S_CNT}, {it}")
                pp(f"s_cbranch_scc1 {label}_st{k}")
                fstamp(pp, st)
                pp.label(f"{label}_st{k}")
    post = [("s", f"s_add_u32 s{S_CNT}, s{S_CNT}, 1"), ("s", f"s_cmp_lt_u32 s{S_CNT}, {NSTG}")]
    S, rest = schedule_step(mf(1), reads(0, 0), first, post, pre_scalars=spill, ds_from=BAR_AT, dma_from=BAR_AT + 1)
    assert not rest
    S.emit(p, dsq, BAR_AT, barrier_code)
    p(f"s_cbranch_scc1 {label}")

def ex_off(m, B, c): return ((m * 9 + B) * 5 + c) * 512
QR, KR, VR = 160, 180, 210
def qreg(bb, c): return QR + 10 * bb + 2 * c
def kreg(B, c): return KR + 10 * B + 2 * c
def vreg(c, B): return VR + 6 * c + 2 * B
V_SEL = 4
V_EX, V_EX0 = 8, 9
V_ST = 10
V_NEG = 12

def pack(p, d, a):
    p(f"v_cvt_pk_bf16_f32 v{d}, v{a}, v{a+1}")
    p(f"v_cvt_pk_bf16_f32 v{d+1}, v{a+2}, v{a+3}")

def q_export_halo(p, rh, ch):
    for k, cb in enumerate(q_halo(rh, ch)):
        m, c = (1, cb - 5) if cb < 10 else (2, cb - 10)
        d = V_T + 2 * k
        pack(p, d, q_acc_halo(k))
        p(f"ds_write_b64 v{V_EX0}, v[{d}:{d+1}] offset:{ex_off(m, 0, c)}")

def q_exchange(p, ch):
    tmp = [V_T, V_T + 2, V_T + 4, V_T + 6]; ti = 0
    def exp(m, b, c, src): p(f"ds_write_b64 v{V_EX}, v[{src}:{src+1}] offset:{ex_off(m, 1 + b, c)}")
    if ch == 0:
        for b in (2, 3):
            for c in range(5):
                d = tmp[ti % 4]; ti += 1
                pack(p, d, q_acc(0, b, c)); exp(0, b, c, d)
        for b in (1, 2, 3):
            for c in range(3):
                d = kreg(b + 1, c) if b == 1 else tmp[ti % 4]; ti += 1
                pack(p, d, q_acc(0, b, 5 + c)); exp(1, b, c, d)
        p("s_waitcnt lgkmcnt(0)"); p("s_barrier")
        for c in range(3): p(f"ds_read_b64 v[{kreg(0,c)}:{kreg(0,c)+1}], v{V_EX} offset:{ex_off(1, 0, c)}")
        for B in range(3):
            for c in (3, 4): p(f"ds_read_b64 v[{kreg(B,c)}:{kreg(B,c)+1}], v{V_EX} offset:{ex_off(1, B, c)}")
        for c in range(5):
            for B in range(3): p(f"ds_read_b64 v[{vreg(c,B)}:{vreg(c,B)+1}], v{V_EX} offset:{ex_off(2, B, c)}")
        for c in range(3): pack(p, kreg(1, c), q_acc(0, 0, 5 + c))
        for b in (0, 1):
            for c in range(5): pack(p, qreg(b, c), q_acc(0, b, c))
    else:
        for b in (0, 1, 3):
            for c in (3, 4):
                d = kreg(b - 1, c) if b >= 1 else tmp[ti % 4]; ti += 1
                pack(p, d, q_acc(1, b, 5 + c)); exp(1, b, c, d)
            for c in range(5):
                d = vreg(c, b - 1) if b >= 1 else tmp[ti % 4]; ti += 1
                pack(p, d, q_acc(1, b, 10 + c)); exp(2, b, c, d)
        p("s_waitcnt lgkmcnt(0)"); p("s_barrier")
        for bb in range(2):
            for c in range(5): p(f"ds_read_b64 v[{qreg(bb,c)}:{qreg(bb,c)+1}], v{V_EX} offset:{ex_off(0, 3 + bb, c)}")
        for B in range(3):
            for c in range(3): p(f"ds_read_b64 v[{kreg(B,c)}:{kreg(B,c)+1}], v{V_EX} offset:{ex_off(1, 2 + B, c)}")
        for c in (3, 4): pack(p, kreg(1, c), q_acc(1, 2, 5 + c))
        for c in range(5): pack(p, vreg(c, 1), q_acc(1, 2, 10 + c))

M_ODD, M_G0, M_GE1, M_LE1, M_GE2, M_LE2, M_G3, M_CUR0, M_CUR1, M_NEG0, M_NEG1 = [S_MASK + 2 * k for k in range(11)]
def sp(x): return f"s[{x}:{x+1}]"
CEXP = struct.unpack("<I", struct.pack("<f", (DH ** -0.5) * math.log2(math.e)))[0]

def att_setup_scalar(p):
    L = V_LANE; T = V_T
    def m64(dst, hi, lo):
        p(f"s_mov_b32 s{dst}, {lo:#x}"); p(f"s_mov_b32 s{dst+1}, {hi:#x}")
    m64(M_ODD, 0xAAAAAAAA, 0xAAAAAAAA); m64(M_G0, 0, 0xFFFF); m64(M_GE1, 0xFFFFFFFF, 0xFFFF0000)
    m64(M_LE1, 0, 0xFFFFFFFF); m64(M_GE2, 0xFFFFFFFF, 0); m64(M_LE2, 0xFFFF, 0xFFFFFFFF); m64(M_G3, 0xFFFF0000, 0)
    p(f"v_and_b32 v{T}, 15, v{L}")
    p(f"v_and_b32 v{T+1}, 1, v{L}")
    p(f"v_lshrrev_b32 v{T+2}, 4, v{L}")
    p(f"v_lshl_add_u32 v{T+2}, v{T+2}, 2, v{T+1}")
    p(f"v_cmp_le_u32 {sp(M_CUR0)}, v{T+2}, v{T}")
    p(f"v_add_u32 v{T+2}, 2, v{T+2}")
    p(f"v_cmp_le_u32 {sp(M_CUR1)}, v{T+2}, v{T}")
    p(f"s_or_b32 s{S_T0}, s{S_J}, s{S_W}")
    p(f"s_cmp_eq_u32 s{S_T0}, 0")
    p(f"s_cselect_b64 {sp(M_NEG0)}, -1, 0")
    p(f"s_cselect_b64 {sp(M_NEG1)}, -1, 0")
    p(f"s_andn2_b64 {sp(M_NEG0)}, {sp(M_NEG0)}, {sp(M_CUR0)}")
    p(f"s_andn2_b64 {sp(M_NEG1)}, {sp(M_NEG1)}, {sp(M_CUR1)}")
    for c in range(5):
        p(f"s_mul_i32 s{S_T0}, s{S_I}, 5")
        p(f"s_add_u32 s{S_T0}, s{S_T0}, {c}")
        p(f"s_lshr_b32 s{S_T1}, s{S_T0}, 1")
        p(f"s_add_u32 s{S_T1}, s{S_T1}, {KS_H}")
        p(f"s_lshl_b32 s{S_T1}, s{S_T1}, 10")
        p(f"s_and_b32 s{S_T0}, s{S_T0}, 1")
        p(f"s_lshl_b32 s{S_T0}, s{S_T0}, 3")
        p(f"s_add_u32 s{S_SO+c}, s{S_T1}, s{S_T0}")

def att_setup_vector(p):
    L = V_LANE; T = V_T
    p(f"v_mov_b32 v{T+3}, 0x0c0c0100"); p(f"v_mov_b32 v{T+4}, 0x01000c0c")
    p(f"v_cndmask_b32 v{T+3}, v{T+3}, v{T+4}, {sp(M_ODD)}")
    p(f"v_mov_b32 v{T+5}, 0x0c0c0302"); p(f"v_mov_b32 v{T+4}, 0x03020c0c")
    p(f"v_cndmask_b32 v{T+5}, v{T+5}, v{T+4}, {sp(M_ODD)}")
    p(f"v_mov_b32 v{T+4}, 0x0c0c0c0c")
    p(f"v_cndmask_b32 v{V_SEL+0}, v{T+3}, v{T+4}, {sp(M_CUR0)}")
    p(f"v_cndmask_b32 v{V_SEL+2}, v{T+4}, v{T+3}, {sp(M_CUR0)}")
    p(f"v_cndmask_b32 v{V_SEL+1}, v{T+5}, v{T+4}, {sp(M_CUR1)}")
    p(f"v_cndmask_b32 v{V_SEL+3}, v{T+4}, v{T+5}, {sp(M_CUR1)}")
    p(f"s_lshl_b32 s{S_T0}, s{S_J}, 3")
    p(f"s_lshl_b32 s{S_T1}, s{S_W}, 1")
    p(f"s_add_u32 s{S_T0}, s{S_T0}, s{S_T1}")
    p(f"s_mul_i32 s{S_T0}, s{S_T0}, {KS_T * 1024}")
    p(f"v_lshlrev_b32 v{V_ST}, 4, v{L}")
    p(f"v_add_u32 v{V_ST}, s{S_T0}, v{V_ST}")
    p(f"v_add_u32 v{V_ST+1}, {KS_T * 1024}, v{V_ST}")
    p(f"v_mov_b32 v{V_NEG}, 0xf149f2ca")
    p(f"s_mov_b32 s{S_T2}, {CEXP:#x}")

def cross4x2(p, A_, B_, op):
    seqs = []
    for a, b, c, d in (A_, B_):
        seqs.append([f"v_permlane32_swap_b32 v{a}, v{b}", f"v_permlane32_swap_b32 v{c}, v{d}",
                     f"{op} v{a}, v{a}, v{b}", f"{op} v{c}, v{c}, v{d}",
                     f"v_permlane16_swap_b32 v{a}, v{c}", f"{op} v{a}, v{a}, v{c}",
                     f"v_mov_b32 v{c}, v{a}", f"v_permlane16_swap_b32 v{a}, v{c}",
                     f"v_mov_b32 v{b}, v{a}", f"v_mov_b32 v{d}, v{c}",
                     f"v_permlane32_swap_b32 v{a}, v{b}", f"v_permlane32_swap_b32 v{c}, v{d}"])
    for x, y in zip(*seqs):
        p(x); p(y)

def attention(p):
    QX, SR, BR, MXR, SMR = 16, 48, 112, 128, 136
    PR, OR, PK = 16, 48, 112
    qmask = {0: [None, M_G0], 1: [M_GE1, M_LE1], 2: [M_GE2, M_LE2], 3: [M_G3, None]}
    U = [(bb, h) for bb in range(2) for h in range(4)]
    p("s_waitcnt lgkmcnt(0)")
    for u, (bb, h) in enumerate(U):
        for half in range(2):
            mk = qmask[h][half]
            for r in range(2):
                src = qreg(bb, h + half) + r; dst = QX + 4 * u + 2 * half + r
                if mk is None: p(f"v_mov_b32 v{dst}, v{src}")
                else: p(f"v_cndmask_b32 v{dst}, 0, v{src}, {sp(mk)}")
    for u, (bb, h) in enumerate(U):
        for pc in range(2):
            s = SR + 8 * u + 4 * pc; k = kreg(bb + pc, h)
            p(f"v_mfma_f32_16x16x32_bf16 v[{s}:{s+3}], v[{k}:{k+3}], v[{QX+4*u}:{QX+4*u+3}], 0")
    for u, (bb, h) in enumerate(U):
        s = SR + 8 * u; b0 = BR + 2 * u
        p(f"v_cndmask_b32 v{s}, v{s}, v{s+1}, {sp(M_ODD)}")
        p(f"v_cndmask_b32 v{s+2}, v{s+2}, v{s+3}, {sp(M_ODD)}")
        p(f"v_cndmask_b32 v{s+4}, v{s+4}, v{s+5}, {sp(M_ODD)}")
        p(f"v_cndmask_b32 v{s+6}, v{s+6}, v{s+7}, {sp(M_ODD)}")
        p(f"v_cndmask_b32 v{b0}, v{s}, v{s+4}, {sp(M_CUR0)}")
        p(f"v_cndmask_b32 v{b0+1}, v{s+2}, v{s+6}, {sp(M_CUR1)}")
        if bb == 0:
            p(f"v_cndmask_b32 v{b0}, v{b0}, v{V_NEG}, {sp(M_NEG0)}")
            p(f"v_cndmask_b32 v{b0+1}, v{b0+1}, v{V_NEG}, {sp(M_NEG1)}")
        p(f"v_max_f32 v{MXR+u}, v{b0}, v{b0+1}")
    cross4x2(p, [MXR + k for k in range(4)], [MXR + 4 + k for k in range(4)], "v_max_f32")
    for u in range(8):
        b0 = BR + 2 * u
        p(f"v_mul_f32 v{MXR+u}, s{S_T2}, v{MXR+u}")
        p(f"v_fma_f32 v{b0}, v{b0}, s{S_T2}, -v{MXR+u}")
        p(f"v_fma_f32 v{b0+1}, v{b0+1}, s{S_T2}, -v{MXR+u}")
    for u in range(8):
        b0 = BR + 2 * u
        p(f"v_exp_f32 v{b0}, v{b0}")
        p(f"v_exp_f32 v{b0+1}, v{b0+1}")
    for u in range(8): p(f"v_add_f32 v{SMR+u}, v{BR+2*u}, v{BR+2*u+1}")
    cross4x2(p, [SMR + k for k in range(4)], [SMR + 4 + k for k in range(4)], "v_add_f32")
    for u in range(8): p(f"v_rcp_f32 v{SMR+u}, v{SMR+u}")
    for u in range(8):
        b0 = BR + 2 * u
        p(f"v_mul_f32 v{b0}, v{b0}, v{SMR+u}")
        p(f"v_mul_f32 v{b0+1}, v{b0+1}, v{SMR+u}")
        p(f"v_cvt_pk_bf16_f32 v{MXR+u}, v{b0}, v{b0+1}")
    for u in range(8):
        for r in range(4): p(f"v_perm_b32 v{PR+4*u+r}, v{MXR+u}, v{MXR+u}, v{V_SEL+r}")
    pairs = [(0, 0), (1, 0), (1, 1), (2, 1), (2, 2), (3, 2), (3, 3), (4, 3)]
    for bb in range(2):
        for k, (c, h) in enumerate(pairs):
            o = OR + 4 * (8 * bb + k); v = vreg(c, bb); pr = PR + 4 * (4 * bb + h)
            p(f"v_mfma_f32_16x16x32_bf16 v[{o}:{o+3}], v[{v}:{v+3}], v[{pr}:{pr+3}], 0")
    sel = {1: M_GE1, 2: M_GE2, 3: M_G3}
    for bb in range(2):
        for c in range(5):
            ks = [k for k, (cc, h) in enumerate(pairs) if cc == c]
            d = PK + 2 * (5 * bb + c)
            pack(p, d, OR + 4 * (8 * bb + ks[0]))
            if len(ks) == 2:
                e = PK + 20 + 2 * (c & 1)
                pack(p, e, OR + 4 * (8 * bb + ks[1]))
                p(f"v_cndmask_b32 v{d}, v{d}, v{e}, {sp(sel[c])}")
                p(f"v_cndmask_b32 v{d+1}, v{d+1}, v{e+1}, {sp(sel[c])}")
            p(f"buffer_store_dwordx2 v[{d}:{d+1}], v{V_ST+bb}, s[{S_AF}:{S_AF+3}], s{S_SO+c} offen sc1")

def lane_bases(p, T, wpitch, xoff):
    L = V_LANE
    p(f"v_and_b32 v{T}, 15, v{L}")
    p(f"v_lshrrev_b32 v{T+1}, 4, v{L}")
    p(f"v_lshrrev_b32 v{T+2}, 1, v{T}")
    p(f"v_xor_b32 v{T+2}, v{T+2}, v{T+1}")
    p(f"v_lshlrev_b32 v{T+2}, 4, v{T+2}")
    p(f"v_lshl_add_u32 v{V_XB0}, v{T}, 7, v{T+2}")
    p(f"v_add_u32 v{V_XB0}, {xoff}, v{V_XB0}")
    p(f"v_xor_b32 v{V_XB1}, 64, v{V_XB0}")
    p(f"v_lshrrev_b32 v{T+3}, 1, v{T+1}")
    p(f"v_lshlrev_b32 v{T+3}, 4, v{T+3}")
    p(f"v_and_b32 v{T+1}, 1, v{T+1}")
    p(f"v_lshl_add_u32 v{T+3}, v{T+1}, 2, v{T+3}")
    p(f"v_lshrrev_b32 v{T+2}, 2, v{T}")
    p(f"v_add_u32 v{T+3}, v{T+3}, v{T+2}")
    p(f"v_mul_u32_u24 v{T+3}, {wpitch}, v{T+3}")
    p(f"v_and_b32 v{T}, 3, v{L}")
    p(f"v_lshl_add_u32 v{V_WB0}, v{T}, 3, v{T+3}")

def x_dma_lane(p, dst, T, row0_sgpr):
    L = V_LANE
    p(f"s_and_b32 s{S_T3}, s{S_W}, 1")
    p(f"s_lshl_b32 s{S_T3}, s{S_T3}, 2")
    p(f"v_lshrrev_b32 v{T}, 4, v{L}")
    p(f"v_add_u32 v{T}, s{S_T3}, v{T}")
    p(f"v_xor_b32 v{T}, v{T}, v{L}")
    p(f"v_and_b32 v{T}, 7, v{T}")
    p(f"v_lshrrev_b32 v{T+1}, 3, v{L}")
    p(f"v_mul_u32_u24 v{T+1}, 1280, v{T+1}")
    p(f"v_lshl_add_u32 v{T+1}, v{T}, 4, v{T+1}")
    p(f"v_add_u32 v{dst}, s{row0_sgpr}, v{T+1}")

def q_dma_setup(p):
    L = V_LANE; T = ACC
    p(f"s_mul_i32 s{S_T2}, s{S_I}, 160")
    p(f"s_lshl_b32 s{S_T0}, s{S_W}, 6")
    p(f"v_add_u32 v{T+8}, s{S_T0}, v{L}")
    for q in range(8):
        if q: p(f"v_add_u32 v{T+8}, 256, v{T+8}")
        div_const(p, T + 1, T + 8, 30, 2111)
        p(f"v_mul_u32_u24 v{T+2}, 30, v{T+1}")
        p(f"v_sub_u32 v{T+2}, v{T+8}, v{T+2}")
        div_const(p, T + 3, T + 2, 10, 29)
        p(f"v_mul_u32_u24 v{T+4}, 1120, v{T+3}")
        p(f"v_lshl_add_u32 v{T+2}, v{T+2}, 4, v{T+4}")
        swap23(p, T + 3, T + 1, T + 4, 0x73)
        p(f"v_mul_u32_u24 v{T+3}, {3 * D * 2}, v{T+3}")
        p(f"v_add3_u32 v{V_DMA+q}, v{T+3}, v{T+2}, s{S_T2}")
    p(f"s_lshl_b32 s{S_T0}, s{S_J}, 7")
    p(f"s_lshl_b32 s{S_T1}, s{S_W}, 3")
    p(f"s_add_u32 s{S_T0}, s{S_T0}, s{S_T1}")
    p(f"s_sub_u32 s{S_T0}, s{S_T0}, 16")
    p(f"s_mul_i32 s{S_T0}, s{S_T0}, 1280")
    x_dma_lane(p, V_DMA + 8, T, S_T0)
    for q in range(1, 4): p(f"v_add_u32 v{V_DMA+8+q}, {q * 32 * 1280}, v{V_DMA+8}")
```

```python
import sys, os
sys.path.insert(0, "gen")
from fz_common import *
import fz_q as Q, fz_h as Hh, fz_p2 as P2, fz_pf as PF
import common

NAME = "gated_mix__sliding_local_dilated__dense_activation_squared_relu__prompt"
LDS_BYTES = 163840

class Sprinkle:
    def __init__(self, p, groups, every):
        self.p, self.q, self.every, self.n = p, list(groups), every, 0
    def __call__(self, text):
        self.p(text); self.n += 1
        if self.q and self.n % self.every == 0:
            for x in self.q.pop(0): self.p(x)
    def label(self, name): self.p.label(name)
    def flush(self):
        while self.q:
            for x in self.q.pop(0): self.p(x)

def phase2_entry_common(p, tag):
    p(f"s_load_dwordx2 s[{P2.S_B2S}:{P2.S_B2S+1}], s[0:1], {KA_B2}")
    P2.p2_empty_srds(p)
    p(f"s_add_u32 s{P2.S_GS}, s{S_AF}, {G_OFF}")
    p(f"s_addc_u32 s{P2.S_GS+1}, s{S_AF+1}, 0")
    p(f"s_mov_b32 s{P2.S_GS+2}, {G_BYTES}")
    p(f"s_mov_b32 s{P2.S_GS+3}, 0x20000")
    p("s_waitcnt lgkmcnt(0)")
    p(f"s_and_b32 s{P2.S_B2S+1}, s{P2.S_B2S+1}, 0xffff")
    p(f"s_mov_b32 s{P2.S_B2S+2}, {D * 2}")
    p(f"s_mov_b32 s{P2.S_B2S+3}, 0x20000")

def h_counter_offset(p, dst):
    p(f"s_lshl_b32 s{dst}, s{S_R2}, 1")
    p(f"s_and_b32 s{dst}, s{dst}, 0xfffffffc")
    if DBG_H: p(f"s_add_u32 s{dst}, s{dst}, {DBG_H * 4}")

V_PWP, V_PH = 161, 14

def gen_role_q(p):
    L = V_LANE
    p.label("L_role_q")
    if "noq" in EXP: p("s_endpgm")
    Q.lane_bases(p, ACC, Q.QP, Q.XOFF)
    Q.q_dma_setup(p)
    p("s_waitcnt lgkmcnt(0)")
    build_srd(p, S_X, P_AX, S * D * 2)
    build_srd(p, S_WT, P_WQKV, D * 3 * D * 2)
    p(f"s_mov_b32 s{S_XSZ}, {S * D * 2}")
    p(f"s_mov_b32 s{S_WSZ}, {D * 3 * D * 2}")
    p(f"s_mov_b32 s{S_T0}, {28 * 1024}")
    p(f"s_mov_b32 s{S_T1}, {64 * 3 * D * 2}")
    p(f"s_cmp_ge_u32 s{S_W}, 2")
    p(f"s_cselect_b32 s{S_FX}, s{S_X}, s{S_WT}")
    p(f"s_cselect_b32 s{S_FX+1}, s{S_X+1}, s{S_WT+1}")
    p(f"s_cselect_b32 s{S_FX+2}, s{S_X+2}, s{S_WT+2}")
    p(f"s_mov_b32 s{S_FX+3}, 0x20000")
    p(f"s_cselect_b32 s{S_FSZ}, s{S_XSZ}, s{S_WSZ}")
    p(f"s_cselect_b32 s{S_FSTEP}, 128, s{S_T1}")
    p(f"s_cselect_b32 s{S_FD}, {Q.XOFF + 14 * 1024}, s{S_T0}")
    p("s_cselect_b64 vcc, -1, 0")
    p(f"v_add_u32 v{ACC}, {112 * 1280}, v{V_DMA+8}")
    p(f"v_cndmask_b32 v{V_DMA+7}, v{V_DMA+7}, v{ACC}, vcc")
    p(f"s_lshl_b32 s{S_WOFS}, s{S_W}, 10")
    for r in (S_RD, S_CNT): p(f"s_mov_b32 s{r}, 0")
    p(f"s_and_b32 s{S_PAR}, s{S_J}, {0 if 'nopar' in EXP else 1}")
    first, second = Q.q_dmas()
    for st in range(3):
        for t in Q.prologue_stage(st, Q.STG, 64 * 3 * D * 2, True): p(t)
        for m0, d in (first + second if st < 2 else first): p(m0); p(d)
    npf = 0
    if USE_PF:
        PF.pf_setup(p, 0, S_AUX, S_AUX2)
        for k in range(PF.PF_DIST - 3):
            for kind, t in PF.pf_touch(S_AUX): p(t)
        npf = PF.PF_DIST - 3
    if STD: fstamp(p, 1)
    build_srd(p, S_AF, P_WS, AF_BYTES)
    build_srd(p, S_WP, P_WS, WP_BYTES, add=WP_OFF)
    build_srd(p, S_OUT, P_OUT, S * D * 2)
    p(f"s_mov_b64 s[{S_DBG}:{S_DBG+1}], s[{P_DBG}:{P_DBG+1}]")
    Q.att_setup_scalar(p)
    for r in range(ACC, ACC + 144, 2): p(f"v_mov_b64 v[{r}:{r+1}], 0")
    for k, t in Q.addr_update(1): p(t)
    p(f"s_waitcnt vmcnt({18 + npf})")
    p("s_barrier")
    if STD: fstamp(p, 2)
    for w in range(1, 4):
        p(f"s_cmp_eq_u32 s{S_W}, {w}")
        p(f"s_cbranch_scc1 L_q_wave{w}")
    def q_hook(pp):
        pp(f"s_cmp_eq_u32 s{S_CNT}, {QHOOK}")
        pp("s_cbranch_scc1 L_q_hook")
        pp.label("L_q_hook_ret")
    for w in range(4):
        rh, ch = w >> 1, w & 1
        p.label(f"L_q_wave{w}")
        for t, tag in Q.q_reads(rh, ch, 0, 0): p(t)
        Q.gen_loop(p, f"L_q_loop{w}", 12, lambda par: Q.q_mfmas(rh, ch, par), lambda half, par: Q.q_reads(rh, ch, half, par),
                   Q.q_dmas(), Q.STG, 64 * 3 * D * 2, True, 1, q_hook if w == 0 else None, PF.pf_touch(S_AUX) if USE_PF else None)
        fstamp(p, 3)
        if "loopsonly" in EXP: p("s_branch L_diag_end")
        p("s_waitcnt vmcnt(0) lgkmcnt(0)")
        if w == 0:
            poll_check(p, DBG_WP * 4, V_PWP, 0, 128, "L_wp_pollq", barrier=False)
        p("s_barrier")
        P2.p2_addr_setup(p)
        p(f"v_lshlrev_b32 v{Q.V_EX0}, 3, v{L}")
        p(f"v_add_u32 v{Q.V_EX}, {rh * 10240}, v{Q.V_EX0}")
        Q.q_export_halo(p, rh, ch)
        p(f"s_branch L_q_ex{ch}")
    p.label("L_q_hook")
    p(f"v_mov_b32 v2, {DBG_WP * 4}")
    p(f"global_load_dword v{V_PWP}, v2, s[{S_DBG}:{S_DBG+1}] sc1")
    p("s_branch L_q_hook_ret")
    pre_all = P2.prefetch_list() + P2.lds_prefetch_list()
    n_ex = N_EX
    for ch in (0, 1):
        p.label(f"L_q_ex{ch}")
        sp = Sprinkle(p, pre_all[:n_ex], SPRINKLE_Q)
        Q.q_exchange(sp, ch)
        sp.flush()
        if ch == 0: p("s_branch L_q_att")
    p.label("L_q_att")
    p(f"s_mov_b32 s{S_ROLE}, 0")
    if "mid" in EXP: fstamp(p, 1)
    phase2_entry_common(p, "q")
    h_counter_offset(p, S_T1)
    poll_issue(p, f"s{S_T1}", V_PH, "L_q_hpoll_iss")
    P2.lds_setup(p)
    Q.att_setup_vector(p)
    p("s_waitcnt lgkmcnt(0)")
    p("s_barrier")
    if "mid" in EXP: fstamp(p, 2)
    sp = Sprinkle(p, pre_all[n_ex:], SPRINKLE_Q)
    Q.attention(sp)
    sp.flush()
    if "mid" in EXP: fstamp(p, 4)
    P2.p2_zero(p)
    h_counter_offset(p, S_T1)
    poll_check(p, f"s{S_T1}", V_PH, min(63, len(pre_all) - n_ex + 10), 8, "L_q_hpoll")
    if "mid" in EXP: fstamp(p, 5)
    p("s_branch L_phase2")

def gen_role_h(p):
    L = V_LANE
    p.label("L_role_h")
    if "noh" in EXP: p("s_endpgm")
    Hh.h_setup(p)
    p(f"s_mov_b32 s{S_FD}, s{S_T2}")
    p("s_waitcnt lgkmcnt(0)")
    build_srd(p, S_X, P_AX, S * D * 2)
    build_srd(p, S_WT, P_W1, D * F * 2)
    p(f"s_mov_b32 s{S_XSZ}, {S * D * 2}")
    p(f"s_mov_b32 s{S_WSZ}, {D * F * 2}")
    p(f"s_lshl_b32 s{S_WOFS}, s{S_W}, 10")
    for r in (S_RD, S_CNT): p(f"s_mov_b32 s{r}, 0")
    p(f"s_and_b32 s{S_PAR}, s{S_J}, {0 if 'nopar' in EXP else 1}")
    first, second = Hh.h_dmas()
    for st in range(2):
        for t in Q.prologue_stage(st, Hh.HSTG, 64 * F * 2, False): p(t)
        for m0, d in first + second: p(m0); p(d)
    for t in Q.prologue_stage(2, Hh.HSTG, 64 * F * 2, False): p(t)
    for m0, d in first: p(m0); p(d)
    if STD: fstamp(p, 1)
    build_srd(p, S_AUX, P_B1, F * 2)
    build_srd(p, S_AUX2, P_GW, D * 2)
    Hh.h_side_issue(p, "")
    if "norp" in EXP: p(f"s_mov_b32 s{Hh.S_RU}, 999")
    else: Hh.repack_address(p)
    build_srd(p, S_AF, P_WS, AF_BYTES)
    build_srd(p, S_WP, P_WS, WP_BYTES, add=WP_OFF)
    build_srd(p, S_OUT, P_OUT, S * D * 2)
    p(f"s_mov_b64 s[{S_DBG}:{S_DBG+1}], s[{P_DBG}:{P_DBG+1}]")
    npf = 0
    if USE_PF:
        PF.pf_setup(p, 1, H_PFS, S_FSTEP, S_FD)
        for k in range(PF.PF_DIST - 3):
            for kind, t in PF.pf_touch(H_PFS): p(t)
        npf = PF.PF_DIST - 3
    Hh.repack_prepare(p)
    if "norp" not in EXP and "norpw" not in EXP: Hh.repack_warm(p)
    for r in range(ACC, ACC + 112, 2): p(f"v_mov_b64 v[{r}:{r+1}], 0")
    for k, t in Q.addr_update(2): p(t)
    p(f"s_cmp_lt_u32 s{Hh.S_RU}, {KS_T * 5}")
    p(f"s_cselect_b32 s{S_ALTM}, {1 << (HOOK_FIN + 1)}, 0")
    p(f"s_waitcnt vmcnt({16 + npf + (0 if 'norp' in EXP or 'norpw' in EXP else 1)})")
    p("s_barrier")
    if STD: fstamp(p, 2)
    p(f"s_mov_b32 s{S_HOOKM}, {(1 << HOOK_ISS) | (1 << HOOK_FIN) | ((1 << HOOK_SIG) if HOOK_SIG < NSTG else 0)}")
    for t, tag in Hh.h_reads(0, 0): p(t)
    nds = [0]
    def hook(pp):
        pp(f"s_bitcmp1_b32 s{S_HOOKM}, s{S_CNT}")
        pp("s_cbranch_scc1 L_h_hook")
        pp.label("L_h_hook_ret")
    def wait(pp, nd):
        nds[0] = nd
        pp(f"s_bitcmp1_b32 s{S_ALTM}, s{S_CNT}")
        pp("s_cbranch_scc1 L_h_alt")
        pp(f"s_waitcnt vmcnt({nd}) lgkmcnt(0)")
        pp.label("L_h_alt_ret")
    Q.gen_loop(p, "L_h_loop", 11, Hh.h_mfmas, Hh.h_reads, Hh.h_dmas(), Hh.HSTG, 64 * F * 2, False, 2, hook,
               PF.pf_touch(H_PFS) if USE_PF else None, wait)
    fstamp(p, 3)
    if "loopsonly" in EXP: p("s_branch L_diag_end")
    p("s_waitcnt vmcnt(0)")
    if HOOK_SIG >= NSTG:
        p("s_barrier")
        signal(p, DBG_WP * 4, "L_h_wp_sig2")
    build_srd(p, S_AUX2, P_AX, S * D * 2)
    Hh.h_gate_issue(p)
    p("s_waitcnt lgkmcnt(0)")
    p(f"s_add_u32 s{P2.S_GS}, s{S_AF}, {G_OFF}")
    p(f"s_addc_u32 s{P2.S_GS+1}, s{S_AF+1}, 0")
    p(f"s_mov_b32 s{P2.S_GS+2}, {G_BYTES}")
    p(f"s_mov_b32 s{P2.S_GS+3}, 0x20000")
    p(f"s_cmp_ge_u32 s{S_W}, 2")
    p("s_cbranch_scc1 L_h_epi1")
    for ch in (0, 1):
        if ch == 1: p.label("L_h_epi1")
        Hh.h_epilogue(p, ch, S_FD)
        p("s_branch L_h_done")
    p.label("L_h_alt")
    p(f"s_waitcnt vmcnt({nds[0] + 8}) lgkmcnt(0)")
    p("s_branch L_h_alt_ret")
    p.label("L_h_hook")
    p(f"s_cmp_eq_u32 s{S_CNT}, {HOOK_SIG}")
    p("s_cbranch_scc1 L_h_hook_sig")
    p(f"s_cmp_eq_u32 s{S_CNT}, {HOOK_FIN}")
    p("s_cbranch_scc1 L_h_hook_fin")
    if "rpst" in EXP: fstamp(p, 1)
    Hh.repack_issue(p, "")
    if "rpst" in EXP: fstamp(p, 2)
    p("s_branch L_h_hook_ret")
    p.label("L_h_hook_fin")
    if "rpst" in EXP: fstamp(p, 4)
    Hh.repack_finish(p, "")
    if "rpst" in EXP: fstamp(p, 5)
    p("s_branch L_h_hook_ret")
    p.label("L_h_hook_sig")
    signal(p, DBG_WP * 4, "L_h_wp_sig")
    p("s_branch L_h_hook_ret")
    p.label("L_h_done")
    p("s_waitcnt vmcnt(16)")
    Hh.h_gate(p, P2.S_GS)
    if "mid" in EXP: fstamp(p, 4)
    p("s_waitcnt vmcnt(0)")
    if "mid" in EXP: fstamp(p, 5)
    p("s_barrier")
    p(f"s_lshl_b32 s{S_T0}, s{S_J}, 2")
    p(f"s_add_u32 s{S_T0}, s{S_T0}, {DBG_H * 4}")
    signal(p, f"s{S_T0}", "L_h_sig")
    p(f"s_mov_b32 s{S_ROLE}, 1")
    P2.p2_addr_setup(p)
    phase2_entry_common(p, "h")
    wait_counter(p, DBG_WP * 4, 128, "L_wp_pollh")
    if "mid" in EXP: fstamp(p, 1)
    P2.lds_setup(p)
    for g in P2.prefetch_list() + P2.lds_prefetch_list():
        for x in g: p(x)
    P2.p2_zero(p)
    if "mid" in EXP: fstamp(p, 2)
    h_counter_offset(p, S_T1)
    wait_counter(p, f"s{S_T1}", 8, "L_p2_h_poll")

QHOOK = int(os.environ.get('QHOOK', '9'))
USE_PF = "pf" in EXP
STD = "mid" not in EXP and "its" not in EXP and "rpst" not in EXP
N_EX = int(os.environ.get("N_EX", "18"))
S_ALTM = 59
HOOK_ISS, HOOK_FIN, HOOK_SIG = [int(x) for x in os.environ.get('HOOKS', '7,8,10').split(',')]
S_HOOKM = 57
H_PFS = 84
SPRINKLE_Q, SPRINKLE_H = int(os.environ.get('SPRQ', '7')), 9
CODE_BYTES = 30720
MIXED = "mixed" in EXP
P2MAP = os.environ.get("P2MAP", "B")

def gen_fused(p, name):
    kernel_head(p, name)
    p("s_cmp_ge_u32 s2, 256")
    p("s_cbranch_scc1 L_end")
    fstamp(p, 0)
    p(f"s_load_dwordx4 s[{P_AX}:{P_AX+3}], s[0:1], {KA_AX}")
    p(f"s_load_dwordx2 s[{P_WO}:{P_WO+1}], s[0:1], {KA_WO}")
    p(f"s_load_dwordx4 s[{P_W1}:{P_W1+3}], s[0:1], {KA_W1}")
    p(f"s_load_dwordx4 s[{P_W2}:{P_W2+3}], s[0:1], {KA_W2}")
    p(f"s_load_dwordx4 s[{P_GW}:{P_GW+3}], s[0:1], {KA_GW}")
    p(f"s_load_dwordx4 s[{P_DBG}:{P_DBG+3}], s[0:1], {KA_DBG}")
    p(f"v_and_b32 v{V_LANE}, 63, v0")
    p("v_lshrrev_b32 v2, 6, v0")
    p("s_and_b32 s3, s2, 7")
    p(f"s_lshr_b32 s{S_T1}, s2, 3")
    p(f"v_readfirstlane_b32 s{S_W}, v2")
    if MIXED:
        p(f"s_lshr_b32 s{S_J}, s3, 1")
        p(f"s_lshl_b32 s{S_J}, s{S_J}, 2")
        p(f"s_lshr_b32 s{S_T0}, s{S_T1}, 2")
        p(f"s_and_b32 s{S_T0}, s{S_T0}, 3")
        p(f"s_add_u32 s{S_J}, s{S_J}, s{S_T0}")
        p(f"s_and_b32 s{S_I}, s3, 1")
    else:
        p(f"s_and_b32 s{S_T2}, s3, 3")
        p(f"s_lshr_b32 s{S_J}, s{S_T2}, 1")
        p(f"s_lshl_b32 s{S_J}, s{S_J}, 3")
        p(f"s_lshr_b32 s{S_T0}, s{S_T1}, 2")
        p(f"s_add_u32 s{S_J}, s{S_J}, s{S_T0}")
        p(f"s_and_b32 s{S_I}, s{S_T2}, 1")
    p(f"s_lshl_b32 s{S_I}, s{S_I}, 2")
    p(f"s_and_b32 s{S_T0}, s{S_T1}, 3")
    p(f"s_add_u32 s{S_I}, s{S_I}, s{S_T0}")
    if P2MAP == "A":
        p(f"s_lshr_b32 s{S_R2}, s{S_T1}, 3")
        p(f"s_lshl_b32 s{S_T0}, s3, 2")
        p(f"s_add_u32 s{S_R2}, s{S_R2}, s{S_T0}")
        p(f"s_and_b32 s{S_N2}, s{S_T1}, 7")
    else:
        p(f"s_lshr_b32 s{S_R2}, s3, 1")
        p(f"s_lshl_b32 s{S_R2}, s{S_R2}, 3")
        p(f"s_lshr_b32 s{S_T0}, s{S_T1}, 2")
        p(f"s_add_u32 s{S_R2}, s{S_R2}, s{S_T0}")
        p(f"s_and_b32 s{S_N2}, s3, 1")
        p(f"s_lshl_b32 s{S_N2}, s{S_N2}, 2")
        p(f"s_and_b32 s{S_T0}, s{S_T1}, 3")
        p(f"s_add_u32 s{S_N2}, s{S_N2}, s{S_T0}")
    if "nopfc" not in EXP: PF.pf_code(p, name, f"L_end-{name}")
    if MIXED: p(f"s_cmp_ge_u32 s2, 128")
    else: p("s_cmp_ge_u32 s3, 4")
    p("s_cbranch_scc1 L_role_h")
    gen_role_q(p)
    gen_role_h(p)
    p.label("L_phase2")
    if "mid" in EXP: fstamp(p, 6)
    P2.p2_main(p, 10)
    if STD: fstamp(p, 6)
    P2.p2_final(p)
    p.label("L_diag_end")
    if "dbgtime" in EXP:
        p("s_waitcnt vmcnt(0)"); fstamp(p, 7)
    if common.DIAG: flush_stamps(p)
    p.label("L_end")
    p("s_endpgm")
    p(KD.format(name=name, vgpr=512, sgpr=102, acc=256))

def flush_stamps(p):
    p("s_waitcnt vmcnt(0) lgkmcnt(0)")
    p(f"{'s_memtime' if common.CYC else 's_memrealtime'} s[16:17]")
    p("s_waitcnt lgkmcnt(0)")
    p(f"s_add_u32 s20, s{S_AF}, {common.STAMP_OFF}")
    p(f"s_addc_u32 s21, s{S_AF+1}, 0")
    p("s_mov_b32 s22, 0x100000"); p("s_mov_b32 s23, 0x20000")
    p(f"s_lshl_b32 s24, s2, 2"); p(f"s_add_u32 s24, s24, s{S_W}"); p("s_lshl_b32 s24, s24, 7")
    for i, r in enumerate(STAMPS + [16]):
        p(f"v_mov_b32 v2, s{r}"); p(f"v_mov_b32 v3, s{r+1}"); p("v_mov_b32 v4, s24")
        p(f"buffer_store_dwordx2 v[2:3], v4, s[20:23], 0 offen offset:{8 * i}")
        p("s_waitcnt vmcnt(0)")

def build(path):
    p = Prog()
    head = open("cdna_kernels/%s.s.ref" % NAME).read().split("; Override launch geometry")[0].rstrip("\n").split("\n")
    head.append("; Override launch geometry by editing the next line (default: block=256,")
    head.append("; @launch grid=(256,1,1) block=(256,1,1) lds=%d" % LDS_BYTES)
    p('.amdgcn_target "amdgcn-amd-amdhsa--gfx950"'); p(".text")
    gen_fused(p, NAME + "_kernel")
    body, n = pad_hazards_fast(p.lines)
    open(path, "w").write("\n".join(head + body) + "\n")
    print("written", path, "nops", n, "lines", len(body))

if __name__ == "__main__":
    args = sys.argv[1:]
    if "--diag" in args: common.DIAG = True; args.remove("--diag")
    if "--cyc" in args: common.CYC = True; args.remove("--cyc")
    build(args[0] if args else "fused.s")
```

```python
from fz_common import *
from fz_q import lane_bases, x_dma_lane

HP = 448
HXOFF = 64 * HP
HSTG = HXOFF + 128 * 128
RP_LDS = RING * HSTG
GX, GW_, B1 = 160, 180, 200

def h_dmas():
    def W(q): return (f"s_add_u32 m0, s{S_DM}, {q * 4096}", f"buffer_load_dwordx4 v{V_DMA+q}, s[{S_WT}:{S_WT+3}], s{S_KW} offen lds")
    def X(q): return (f"s_add_u32 m0, s{S_DM}, {HXOFF + q * 4096}", f"buffer_load_dwordx4 v{V_DMA+8+q}, s[{S_X}:{S_X+3}], s{S_KX} offen lds")
    return [W(0), W(1), X(0), W(2), X(1)], [W(3), W(4), X(2), W(5), X(3), W(6)]

def h_reads(half, par):
    xa = V_XA0 if half == 0 else V_XA1
    xs = [(f"ds_read_b128 a[{A_X+20*par+4*b}:{A_X+20*par+4*b+3}], v{xa} offset:{b * 2048}", ("x", par, b)) for b in range(4)]
    ws = []
    for c in range(7):
        r = A_WF + 32 * par + 4 * c
        va = V_WA0 if c % 2 == 0 else V_WA1
        ws.append((f"ds_read_b64_tr_b16 a[{r}:{r+1}], v{va} offset:{32 * half * HP + c * 32}", ("w", par, c)))
        ws.append((f"ds_read_b64_tr_b16 a[{r+2}:{r+3}], v{va} offset:{(32 * half + 8) * HP + c * 32}", ("w", par, c)))
    return ws[:2] + xs + ws[2:]

def h_mfmas(par):
    out = []
    for c in range(7):
        for b in range(4):
            a = ACC + 4 * (b * 7 + c); w = A_WF + 32 * par + 4 * c; x = A_X + 20 * par + 4 * b
            out.append((f"v_mfma_f32_16x16x32_bf16 v[{a}:{a+3}], a[{w}:{w+3}], a[{x}:{x+3}], v[{a}:{a+3}]", {("w", par, c), ("x", par, b)}))
    return out

def h_setup(p):
    L = V_LANE; T = ACC
    p(f"s_mul_i32 s{S_T1}, s{S_I}, 224")
    p(f"s_min_u32 s{S_T1}, s{S_T1}, 1504")
    p(f"s_lshl_b32 s{S_T2}, s{S_T1}, 1")
    lane_bases(p, T, HP, HXOFF)
    p(f"v_lshlrev_b32 v{T+1}, 5, v{T+1}")
    p(f"v_sub_u32 v{V_WB1}, v{V_WB0}, v{T+1}")
    p(f"v_add_u32 v{V_WB0}, v{V_WB0}, v{T+1}")
    p(f"s_cmp_ge_u32 s{S_W}, 2")
    p("s_cselect_b64 vcc, -1, 0")
    p(f"v_add_u32 v{T}, {7 * 32}, v{V_WB0}")
    p(f"v_add_u32 v{T+1}, {7 * 32}, v{V_WB1}")
    p(f"v_cndmask_b32 v{V_WB0}, v{V_WB0}, v{T+1}, vcc")
    p(f"v_cndmask_b32 v{V_WB1}, v{V_WB1}, v{T}, vcc")
    p(f"s_and_b32 s{S_T0}, s{S_W}, 1")
    p(f"s_lshl_b32 s{S_T0}, s{S_T0}, 13")
    p(f"v_add_u32 v{V_XB0}, s{S_T0}, v{V_XB0}")
    p(f"v_add_u32 v{V_XB1}, s{S_T0}, v{V_XB1}")
    p(f"s_lshl_b32 s{S_T0}, s{S_W}, 6")
    p(f"v_add_u32 v{T+8}, s{S_T0}, v{L}")
    for q in range(7):
        if q: p(f"v_add_u32 v{T+8}, 256, v{T+8}")
        div_const(p, T + 1, T + 8, 28, 1791)
        p(f"v_mul_u32_u24 v{T+2}, 28, v{T+1}")
        p(f"v_sub_u32 v{T+2}, v{T+8}, v{T+2}")
        p(f"v_lshrrev_b32 v{T+3}, 1, v{T+1}")
        p(f"v_and_b32 v{T+3}, 2, v{T+3}")
        p(f"v_xor_b32 v{T+2}, v{T+2}, v{T+3}")
        swap23(p, T + 3, T + 1, T + 4, 0x33)
        p(f"v_mul_u32_u24 v{T+3}, {F * 2}, v{T+3}")
        p(f"v_lshl_add_u32 v{T+3}, v{T+2}, 4, v{T+3}")
        p(f"v_add_u32 v{V_DMA+q}, s{S_T2}, v{T+3}")
    p(f"s_lshl_b32 s{S_T0}, s{S_J}, 7")
    p(f"s_lshl_b32 s{S_T1}, s{S_W}, 3")
    p(f"s_add_u32 s{S_T0}, s{S_T0}, s{S_T1}")
    p(f"s_mul_i32 s{S_T0}, s{S_T0}, 1280")
    x_dma_lane(p, V_DMA + 8, T, S_T0)
    for q in range(1, 4): p(f"v_add_u32 v{V_DMA+8+q}, {q * 32 * 1280}, v{V_DMA+8}")

S_RU, S_RKS, S_RC = 92, 93, 94
V_RPL = 220
S_RPH = 75
S_RPB = 74
def repack_address(p):
    L = V_LANE; T = V_RPL
    p(f"s_lshl_b32 s{S_T0}, s{S_J}, 3")
    p(f"s_add_u32 s{S_T0}, s{S_T0}, s{S_I}")
    p(f"s_mul_i32 s{S_RU}, s{S_T0}, 3")
    p(f"s_add_u32 s{S_RU}, s{S_RU}, s{S_W}")
    p(f"s_cmp_eq_u32 s{S_W}, 3")
    p(f"s_cselect_b32 s{S_RU}, 999, s{S_RU}")
    p(f"s_mul_hi_u32 s{S_RKS}, s{S_RU}, {-(-(1 << 32) // 5)}")
    p(f"s_mul_i32 s{S_T0}, s{S_RKS}, 5")
    p(f"s_sub_u32 s{S_RC}, s{S_RU}, s{S_T0}")
    p(f"s_cmp_lt_u32 s{S_RKS}, {KS_H}")
    p(f"s_cselect_b32 s{S_FX}, s{P_W2}, s{P_WO}")
    p(f"s_cselect_b32 s{S_FX+1}, s{P_W2+1}, s{P_WO+1}")
    p(f"s_cselect_b32 s{S_T0}, 0, {KS_H}")
    p(f"s_mov_b32 s{S_T1}, {D * D * 2}")
    p(f"s_cselect_b32 s{S_FX+2}, {F * D * 2}, s{S_T1}")
    p(f"s_and_b32 s{S_FX+1}, s{S_FX+1}, 0xffff")
    p(f"s_mov_b32 s{S_FX+3}, 0x20000")
    p(f"s_sub_u32 s{S_T0}, s{S_RKS}, s{S_T0}")
    p(f"s_lshl_b32 s{S_T1}, s{S_T0}, 5")
    p(f"s_lshr_b32 s{S_T2}, s{S_T0}, 1")
    p(f"s_mul_i32 s{S_T2}, s{S_T2}, 80")
    p(f"s_and_b32 s{S_T3}, s{S_T0}, 1")
    p(f"s_lshl_b32 s{S_T3}, s{S_T3}, 5")
    p(f"s_add_u32 s{S_T2}, s{S_T2}, s{S_T3}")
    p(f"s_mul_i32 s{S_T3}, s{S_T0}, 160")
    p(f"s_sub_u32 s{S_T3}, s{S_T3}, {160 * 16 - 64}")
    p(f"s_cmp_ge_u32 s{S_T0}, 16")
    p(f"s_cselect_b32 s{S_T2}, s{S_T3}, s{S_T2}")
    p(f"s_cselect_b32 s{S_RPH}, 80, 16")
    p(f"s_cmp_lt_u32 s{S_RKS}, {KS_H}")
    p(f"s_cselect_b32 s{S_T0}, s{S_T1}, s{S_T2}")
    p(f"s_cselect_b32 s{S_RPH}, 16, s{S_RPH}")
    p(f"s_mul_i32 s{S_RPH}, s{S_RPH}, 1280")
    p(f"s_mul_i32 s{S_T0}, s{S_T0}, 1280")
    p(f"s_lshl_b32 s{S_T1}, s{S_RC}, 8")
    p(f"s_add_u32 s{S_T2}, s{S_T0}, s{S_T1}")
    p(f"s_mov_b32 s{S_RPB}, s{S_T2}")
    p(f"v_lshrrev_b32 v2, 4, v{L}")
    p(f"v_lshlrev_b32 v{T}, 1, v2")
    p(f"v_xor_b32 v{T}, v{T}, v{L}")
    p(f"v_and_b32 v{T}, 15, v{T}")
    p(f"v_xor_b32 v{T+1}, 8, v{T}")
    p(f"v_mul_u32_u24 v2, 1280, v2")
    p(f"v_add_u32 v2, s{S_T2}, v2")
    p(f"v_lshl_add_u32 v{T}, v{T}, 4, v2")
    p(f"v_lshl_add_u32 v{T+1}, v{T+1}, 4, v2")

def repack_warm(p):
    L = V_LANE
    p(f"v_lshrrev_b32 v2, 1, v{L}")
    p(f"v_and_b32 v2, 15, v2")
    p(f"v_mul_u32_u24 v2, 1280, v2")
    p(f"v_cmp_lt_u32 vcc, 31, v{L}")
    p(f"v_mov_b32 v3, s{S_RPH}")
    p(f"v_cndmask_b32 v3, 0, v3, vcc")
    p(f"v_add_u32 v2, v2, v3")
    p(f"v_and_b32 v3, 1, v{L}")
    p(f"v_lshl_add_u32 v2, v3, 7, v2")
    p(f"v_add_u32 v2, s{S_RPB}, v2")
    p(f"s_cmp_lt_u32 s{S_RU}, {KS_T * 5}")
    p("s_cselect_b64 vcc, -1, 0")
    p("v_cndmask_b32 v2, -1, v2, vcc")
    p(f"buffer_load_dword v160, v2, s[{S_FX}:{S_FX+3}], 0 offen")

def repack_issue(p, tag):
    T = V_RPL
    p(f"s_cmp_ge_u32 s{S_RU}, {KS_T * 5}")
    p(f"s_cbranch_scc1 L_rp_noissue{tag}")
    p(f"s_lshl_b32 s{S_T1}, s{S_W}, 13")
    p(f"s_add_u32 s{S_T1}, s{S_T1}, {RP_LDS}")
    for t in range(8):
        p(f"s_add_u32 m0, s{S_T1}, {t * 1024}")
        if t < 4: p(f"s_mov_b32 s{S_T3}, {t * 4 * 1280}")
        else: p(f"s_add_u32 s{S_T3}, s{S_RPH}, {(t - 4) * 4 * 1280}")
        p(f"buffer_load_dwordx4 v{T+(t&1)}, s[{S_FX}:{S_FX+3}], s{S_T3} offen lds")
    p.label(f"L_rp_noissue{tag}")

V_RPA, V_RPS = 216, 219
S_RPO = 91
def repack_prepare(p):
    L = V_LANE; T = V_RPA
    p(f"v_lshrrev_b32 v{T}, 2, v{L}")
    p(f"v_and_b32 v{T+1}, 7, v{T}")
    p(f"v_lshlrev_b32 v{T+1}, 5, v{T+1}")
    p(f"v_lshl_add_u32 v{T}, v{T}, 8, v{T+1}")
    p(f"v_and_b32 v{T+1}, 3, v{L}")
    p(f"v_lshl_add_u32 v{T}, v{T+1}, 3, v{T}")
    p(f"s_lshl_b32 s{S_T1}, s{S_W}, 13")
    p(f"s_add_u32 s{S_T1}, s{S_T1}, {RP_LDS}")
    p(f"v_add_u32 v{T}, s{S_T1}, v{T}")
    p(f"v_lshlrev_b32 v{V_RPS}, 4, v{L}")
    p(f"s_mul_i32 s{S_RPO}, s{S_RKS}, 40")
    p(f"s_lshl_b32 s{S_T0}, s{S_RC}, 3")
    p(f"s_add_u32 s{S_RPO}, s{S_RPO}, s{S_T0}")
    p(f"s_lshl_b32 s{S_RPO}, s{S_RPO}, 10")

def repack_finish(p, tag):
    T = V_RPA; FR = 224
    p(f"s_cmp_ge_u32 s{S_RU}, {KS_T * 5}")
    p(f"s_cbranch_scc1 L_rp_nofin{tag}")
    for batch in range(2):
        for k in range(4):
            cb8 = 4 * batch + k
            p(f"v_xor_b32 v{T+1+(k&1)}, {cb8 * 32}, v{T}")
            p(f"ds_read_b64_tr_b16 v[{FR+4*k}:{FR+4*k+1}], v{T+1+(k&1)}")
            p(f"ds_read_b64_tr_b16 v[{FR+4*k+2}:{FR+4*k+3}], v{T+1+(k&1)} offset:{16 * 256}")
        for k in range(4):
            p(f"s_waitcnt lgkmcnt({2 * (3 - k)})")
            off = f" offset:{k * 1024}" if k else ""
            p(f"buffer_store_dwordx4 v[{FR+4*k}:{FR+4*k+3}], v{V_RPS}, s[{S_WP}:{S_WP+3}], s{S_RPO} offen{off} sc1")
        if batch == 0: p(f"s_add_u32 s{S_RPO}, s{S_RPO}, 4096")
    p.label(f"L_rp_nofin{tag}")

SIDE_LDS = RP_LDS + 3 * 8192
def h_side_issue(p, tag):
    L = V_LANE; T = 216
    p(f"s_cmp_lg_u32 s{S_W}, 3")
    p(f"s_cbranch_scc1 L_side_skip{tag}")
    p(f"v_lshlrev_b32 v{T}, 4, v{L}")
    p(f"s_mov_b32 m0, {SIDE_LDS}")
    p(f"v_add_u32 v{T+1}, 1024, v{T}")
    p(f"buffer_load_dwordx4 v{T}, s[{S_AUX2}:{S_AUX2+3}], 0 offen lds")
    p(f"s_mov_b32 m0, {SIDE_LDS + 1024}")
    p(f"v_add_u32 v{T+2}, s{S_FD}, v{T}")
    p(f"buffer_load_dwordx4 v{T+1}, s[{S_AUX2}:{S_AUX2+3}], 0 offen lds")
    p(f"s_mov_b32 m0, {SIDE_LDS + 2048}")
    p("s_nop 0")
    p(f"buffer_load_dwordx4 v{T+2}, s[{S_AUX}:{S_AUX+3}], 0 offen lds")
    p.label(f"L_side_skip{tag}")

def h_gate_issue(p):
    L = V_LANE; T = V_T
    p(f"s_lshl_b32 s{S_T0}, s{S_J}, 7")
    p(f"s_lshl_b32 s{S_T1}, s{S_I}, 4")
    p(f"s_add_u32 s{S_T0}, s{S_T0}, s{S_T1}")
    p(f"s_lshl_b32 s{S_T1}, s{S_W}, 2")
    p(f"s_add_u32 s{S_T0}, s{S_T0}, s{S_T1}")
    p(f"v_lshrrev_b32 v{T}, 4, v{L}")
    p(f"v_add_u32 v{T+6}, s{S_T0}, v{T}")
    p(f"v_mul_u32_u24 v{T}, 1280, v{T+6}")
    p(f"v_and_b32 v{T+1}, 15, v{L}")
    p(f"v_lshlrev_b32 v{T+1}, 4, v{T+1}")
    p(f"v_add_u32 v{T}, v{T}, v{T+1}")
    for t in range(5):
        p(f"buffer_load_dwordx4 v[{GX+4*t}:{GX+4*t+3}], v{T}, s[{S_AUX2}:{S_AUX2+3}], 0 offen offset:{256 * t}")
    p(f"v_add_u32 v{T+1}, {SIDE_LDS}, v{T+1}")
    for t in range(5):
        p(f"ds_read_b128 v[{GW_+4*t}:{GW_+4*t+3}], v{T+1} offset:{256 * t}")
    p(f"s_lshr_b32 s{S_T0}, s{S_W}, 1")
    p(f"s_mul_i32 s{S_T0}, s{S_T0}, 224")
    p(f"s_add_u32 s{S_T0}, s{S_T0}, {SIDE_LDS + 2048}")
    p(f"v_lshrrev_b32 v{T}, 4, v{L}")
    p(f"v_lshl_add_u32 v{T}, v{T}, 3, s{S_T0}")
    for c in range(7):
        p(f"ds_read_b64 v[{B1+2*c}:{B1+2*c+1}], v{T} offset:{32 * c}")

def h_gate(p, gsrd):
    L = V_LANE; T = V_T + 2
    p(f"v_mov_b32 v{T}, 0")
    p(f"v_mov_b32 v{T+1}, 0")
    for t in range(10):
        p(f"v_dot2_f32_bf16 v{T}, v{GX+t}, v{GW_+t}, v{T}")
        p(f"v_dot2_f32_bf16 v{T+1}, v{GX+10+t}, v{GW_+10+t}, v{T+1}")
    p(f"v_add_f32 v{T}, v{T}, v{T+1}")
    for rot in (8, 4, 2, 1):
        p(f"v_add_f32_dpp v{T}, v{T}, v{T} row_ror:{rot} row_mask:0xf bank_mask:0xf")
    p(f"v_mul_f32 v{T}, 0xbfb8aa3b, v{T}")
    p(f"v_exp_f32 v{T}, v{T}")
    p(f"v_add_f32 v{T}, 1.0, v{T}")
    p(f"v_rcp_f32 v{T}, v{T}")
    p(f"s_lshl_b32 s{S_T0}, s{S_J}, 3")
    p(f"s_add_u32 s{S_T0}, s{S_T0}, s{S_I}")
    p(f"s_lshl_b32 s{S_T0}, s{S_T0}, 2")
    p(f"s_add_u32 s{S_T0}, s{S_T0}, s{S_W}")
    p(f"s_lshl_b32 s{S_T0}, s{S_T0}, 8")
    p(f"v_lshl_add_u32 v{T+1}, v{L}, 2, s{S_T0}")
    p(f"buffer_store_dword v{T}, v{T+1}, s[{gsrd}:{gsrd+3}], 0 offen sc1")

def h_epilogue(p, ch, n0_sgpr, pre_barrier=None):
    L = V_LANE; T = V_T
    BF = 128
    for c in range(7):
        lo, hi = B1 + 2 * c, B1 + 2 * c + 1; r = BF + 4 * c
        p(f"v_lshlrev_b32 v{r}, 16, v{lo}"); p(f"v_and_b32 v{r+1}, 0xffff0000, v{lo}")
        p(f"v_lshlrev_b32 v{r+2}, 16, v{hi}"); p(f"v_and_b32 v{r+3}, 0xffff0000, v{hi}")
    p(f"s_lshl_b32 s{S_T0}, s{S_J}, 3")
    p(f"s_and_b32 s{S_T1}, s{S_W}, 1")
    p(f"s_lshl_b32 s{S_T1}, s{S_T1}, 2")
    p(f"s_add_u32 s{S_T0}, s{S_T0}, s{S_T1}")
    p(f"s_mul_i32 s{S_T0}, s{S_T0}, {KS_T * 1024}")
    p(f"s_lshl_b32 s{S_T1}, s{n0_sgpr}, 4")
    p(f"s_add_u32 s{S_T0}, s{S_T0}, s{S_T1}")
    p(f"v_lshlrev_b32 v{T}, 4, v{L}")
    p(f"v_add_u32 v{T}, s{S_T0}, v{T}")
    PK = 214
    XCH = RP_LDS
    KEEP = 232
    p(f"s_and_b32 s{S_T1}, s{S_W}, 1")
    p(f"s_lshl_b32 s{S_T1}, s{S_T1}, 11")
    p(f"s_add_u32 s{S_T1}, s{S_T1}, {XCH}")
    p(f"v_lshl_add_u32 v{T+2}, v{L}, 3, s{S_T1}")
    nst = 0
    for b in range(4):
        if b: p(f"v_add_u32 v{T}, {KS_T * 1024}, v{T}")
        p(f"v_add_u32 v{T+1}, 4096, v{T}")
        for c in range(7):
            a = ACC + 4 * (b * 7 + c); bf = BF + 4 * c
            for h in (0, 2): p(f"v_pk_add_f32 v[{a+h}:{a+h+1}], v[{a+h}:{a+h+1}], v[{bf+h}:{bf+h+1}]")
            for r in range(4): p(f"v_max_f32 v{a+r}, 0, v{a+r}")
            for h in (0, 2): p(f"v_pk_mul_f32 v[{a+h}:{a+h+1}], v[{a+h}:{a+h+1}], v[{a+h}:{a+h+1}]")
            cbl = 7 * ch + c
            half = cbl & 1; ks = cbl >> 1
            single = (ch == 0 and c == 6) or (ch == 1 and c == 0)
            if single and ch == 0: d = KEEP + 2 * b
            else: d = PK + 4 * (nst % 4) + 2 * half
            p(f"v_cvt_pk_bf16_f32 v{d}, v{a}, v{a+1}")
            p(f"v_cvt_pk_bf16_f32 v{d+1}, v{a+2}, v{a+3}")
            va = T + (ks >> 2); off = (ks & 3) * 1024
            if single and ch == 1:
                p(f"ds_write_b64 v{T+2}, v[{d}:{d+1}] offset:{b * 512}"); nst += 1
            elif not single and half == 1:
                p(f"buffer_store_dwordx4 v[{d-2}:{d+1}], v{va}, s[{S_AF}:{S_AF+3}], 0 offen offset:{off} sc1"); nst += 1
    if pre_barrier: pre_barrier(p)
    p("s_waitcnt lgkmcnt(0)")
    p("s_barrier")
    if ch == 0:
        p(f"v_subrev_u32 v{T}, {3 * KS_T * 1024}, v{T}")
        for b in range(4):
            q = PK + 4 * b
            p(f"v_mov_b64 v[{q}:{q+1}], v[{KEEP+2*b}:{KEEP+2*b+1}]")
            p(f"ds_read_b64 v[{q+2}:{q+3}], v{T+2} offset:{b * 512}")
        for b in range(4):
            q = PK + 4 * b
            if b: p(f"v_add_u32 v{T}, {KS_T * 1024}, v{T}")
            p(f"s_waitcnt lgkmcnt({3 - b})")
            p(f"buffer_store_dwordx4 v[{q}:{q+3}], v{T}, s[{S_AF}:{S_AF+3}], 0 offen offset:3072 sc1")
```

```python
from fz_common import *

import os
OUTSC = os.environ.get('OUTSC', '')
P2SC = '' if 'p2plain' in EXP else 'sc1'
NSTEP, NH = 19, 14
S_AFD, S_WPD, S_GS, S_B2S = 16, 20, 24, 36
POLL_ISSUE, POLL_CHECK = 5, 9
V_POLL = 50

def acc(base, b, cb): return base + 4 * (b * 5 + cb)

def p2_addr_setup(p):
    L = V_LANE
    p(f"s_mul_i32 s{S_T0}, s{S_N2}, 5120")
    p(f"s_mul_i32 s{S_T1}, s{S_W}, 40960")
    p(f"s_add_u32 s{S_T0}, s{S_T0}, s{S_T1}")
    p(f"v_lshlrev_b32 v{V_PW}, 4, v{L}")
    p(f"v_add_u32 v{V_PA}, 0, v{V_PW}")
    p(f"v_add_u32 v{V_PW}, s{S_T0}, v{V_PW}")
    p(f"v_add_u32 v{V_PW+1}, 4096, v{V_PW}")
    p(f"s_mul_i32 s{S_T0}, s{S_R2}, {4 * KS_T * 1024}")
    p(f"s_lshl_b32 s{S_T1}, s{S_W}, 10")
    p(f"s_add_u32 s{S_T0}, s{S_T0}, s{S_T1}")
    p(f"v_add_u32 v{V_PA}, s{S_T0}, v{V_PA}")
    for b in range(1, 4): p(f"v_add_u32 v{V_PA+b}, {b * KS_T * 1024}, v{V_PA}")

def step_ks(m): return 4 * m if m < NH else KS_H + 4 * (m - NH)

def w_loads(m):
    sr = S_WPD if m == NH - 1 else S_WP
    pre = f"s_mov_b32 s{S_SW}, {step_ks(m) * 40960}"
    ins = []
    for cb in range(5):
        r = A_WR + 20 * (m % NWR) + 4 * cb
        va, off = (V_PW, cb * 1024) if cb < 4 else (V_PW + 1, 0)
        o = f" offset:{off}" if off else ""
        ins.append(f"buffer_load_dwordx4 a[{r}:{r+3}], v{va}, s[{sr}:{sr+3}], s{S_SW} offen{o} {P2SC}")
    return pre, ins

V_PA8 = 44
def a_loads(m):
    sr = S_AFD if m == NH - 1 else S_AF
    pre = f"s_mov_b32 s{S_SA}, {step_ks(m) * 1024}"
    ins = []
    for b in range(4):
        r = A_AR + 16 * (m % NAR) + 4 * b
        if m == NSTEP - 1:
            ins.append(f"buffer_load_dwordx2 a[{r}:{r+1}], v{V_PA8+b}, s[{sr}:{sr+3}], s{S_SA} offen {P2SC}")
            ins.append(f"buffer_load_dwordx2 a[{r+2}:{r+3}], v{V_PA8+b}, s[{sr}:{sr+3}], s{S_SA} offen offset:512 {P2SC}")
        else:
            ins.append(f"buffer_load_dwordx4 a[{r}:{r+3}], v{V_PA+b}, s[{sr}:{sr+3}], s{S_SA} offen {P2SC}")
    return pre, ins

NLD = 0 if "nolds" in EXP else 7
S_LWB = 58
V_LWR = 242
def lds_steps(): return range(NWR, NWR + NLD)

def lds_setup(p):
    L = V_LANE
    p(f"s_mul_i32 s{S_LWB}, s{S_W}, {7 * 5120}")
    p(f"v_lshlrev_b32 v{V_LWR}, 4, v{L}")
    p(f"v_add_u32 v{V_LWR}, s{S_LWB}, v{V_LWR}")

def lds_prefetch_list():
    out = []
    for m in lds_steps():
        sr = S_WPD if m == NH - 1 else S_WP
        slot = (m - NWR) * 5120
        for cb in range(5):
            g = []
            if cb == 0: g += [f"s_mov_b32 s{S_SW}, {step_ks(m) * 40960}", f"s_add_u32 m0, s{S_LWB}, {slot}", "s_nop 0"]
            if cb == 4: g += [f"s_add_u32 m0, s{S_LWB}, {slot + 4096}", "s_nop 0"]
            va, off = (V_PW, cb * 1024) if cb < 4 else (V_PW + 1, 0)
            o = f" offset:{off}" if off else ""
            g.append(f"buffer_load_dwordx4 v{va}, s[{sr}:{sr+3}], s{S_SW} offen{o} {P2SC} lds")
            out.append(g)
    return out

def lds_reads(m):
    slot = (m - NWR) * 5120
    return [f"ds_read_b128 a[{A_WR+20*(m%NWR)+4*cb}:{A_WR+20*(m%NWR)+4*cb+3}], v{V_LWR} offset:{slot + cb * 1024}" for cb in range(5)]

def prefetch_list():
    out = []
    for m in range(NWR):
        pre, ins = w_loads(m)
        out.append([pre, ins[0]])
        out += [[x] for x in ins[1:]]
    return out

def p2_empty_srds(p):
    for dst, src, nb in ((S_AFD, S_AF, AF_BYTES), (S_WPD, S_WP, WP_BYTES)):
        p(f"s_mov_b32 s{dst}, s{src}"); p(f"s_mov_b32 s{dst+1}, s{src+1}")
        p(f"s_cmp_lt_u32 s{S_W}, 2")
        p(f"s_cselect_b32 s{dst+2}, {nb}, 0")
        p(f"s_mov_b32 s{dst+3}, 0x20000")

V_1G = 52
V_GP = 4
BF = 30
SIG_STEP = 2

def p2_zero(p):
    for r in range(ACCB, ACCA + 80, 2): p(f"v_mov_b64 v[{r}:{r+1}], 0")

def p2_main(p, n_old_stores):
    L = V_LANE
    vq = VmQ()
    for k in range(n_old_stores): vq.issue("OST")
    for m in range(2):
        pre, ins = a_loads(m); p(pre)
        for x in ins: p(x); vq.issue(("A", m))
    p(f"v_and_b32 v2, 15, v{L}")
    p(f"v_lshrrev_b32 v3, 2, v2")
    p(f"v_and_b32 v2, 3, v2")
    p(f"v_lshlrev_b32 v2, 6, v2")
    p(f"v_lshl_add_u32 v2, v3, 8, v2")
    p(f"s_lshl_b32 s{S_T0}, s{S_R2}, 12")
    p(f"v_add_u32 v{V_1G}, s{S_T0}, v2")
    p(f"v_lshlrev_b32 v2, 3, v{L}")
    for b in range(4): p(f"v_sub_u32 v{V_PA8+b}, v{V_PA+b}, v2")
    p(f"v_lshrrev_b32 v3, 4, v{L}")
    p(f"s_mul_i32 s{S_T0}, s{S_N2}, 160")
    p(f"v_lshl_add_u32 v{V_1G+1}, v3, 3, s{S_T0}")
    if "mid" not in EXP and "its" not in EXP and "rpst" not in EXP: fstamp(p, 4)
    for m in range(NSTEP):
        base = ACCB if m < NH else ACCA
        need = [("A", m), ("W", m)]
        if m == POLL_CHECK: need.append("POLL")
        if m == NH: need += ["G", "B2"]
        n = vq.count_for(need)
        lg = " lgkmcnt(0)" if (m - 1) >= 1 and (m - 1 + NWR - 1) in lds_steps() else ""
        if n is not None:
            p(f"s_waitcnt vmcnt({n}){lg}"); vq.retire(n)
        elif lg: p(f"s_waitcnt{lg}")
        if m == SIG_STEP:
            n = vq.count_for(["OST"])
            p(f"s_cmp_lg_u32 s{S_ROLE}, 0")
            p("s_cbranch_scc1 L_p2_nosig")
            if n is not None: p(f"s_waitcnt vmcnt({n})")
            p("s_barrier")
            p(f"s_lshl_b32 s{S_T0}, s{S_J}, 2")
            p(f"s_add_u32 s{S_T0}, s{S_T0}, {DBG_Q * 4}")
            signal(p, f"s{S_T0}", "L_q_sig")
            p.label("L_p2_nosig")
        if m == POLL_CHECK:
            p(f"v_readfirstlane_b32 s{S_T0}, v{V_POLL}")
            p("s_nop 3")
            p(f"s_cmp_ge_u32 s{S_T0}, 8")
            p("s_cbranch_scc1 L_p2_o_ready")
            p(f"s_lshl_b32 s{S_T1}, s{S_R2}, 1")
            p(f"s_and_b32 s{S_T1}, s{S_T1}, 0xfffffffc")
            p(f"s_add_u32 s{S_T1}, s{S_T1}, {DBG_Q * 4}")
            poll_loop(p, f"s{S_T1}", 8, "L_p2_o_poll")
            p.label("L_p2_o_ready")
        if m == NH and "mid" not in EXP and "its" not in EXP and "rpst" not in EXP: fstamp(p, 5)
        mf = []
        for cb in range(5):
            for b in range(4):
                a = acc(base, b, cb); w = A_WR + 20 * (m % NWR) + 4 * cb; x = A_AR + 16 * (m % NAR) + 4 * b
                mf.append(f"v_mfma_f32_16x16x32_bf16 v[{a}:{a+3}], a[{w}:{w+3}], a[{x}:{x+3}], v[{a}:{a+3}]")
        loads = []
        steps_a = [2, 3, 4, 5] if m == 0 else ([m + NAR - 1] if m + NAR - 1 < NSTEP else [])
        for mm in steps_a:
            pre, ins = a_loads(mm)
            loads += [(pre if k == 0 else None, x, ("A", mm)) for k, x in enumerate(ins)]
        dsr = []
        if m >= 1 and m + NWR - 1 < NSTEP:
            mw = m + NWR - 1
            if mw in lds_steps(): dsr = lds_reads(mw)
            else:
                pre, ins = w_loads(mw)
                loads += [(pre if k == 0 else None, x, ("W", mw)) for k, x in enumerate(ins)]
        if m == 2:
            for b in range(4):
                loads.append((None, f"buffer_load_dword v{V_G+b}, v{V_1G}, s[{S_GS}:{S_GS+3}], 0 offen offset:{1024 * b} sc1", "G"))
            for cb in range(5):
                loads.append((None, f"buffer_load_dwordx2 v[{V_B2+2*cb}:{V_B2+2*cb+1}], v{V_1G+1}, s[{S_B2S}:{S_B2S+3}], 0 offen offset:{32 * cb}", "B2"))
        if m == POLL_ISSUE:
            p(f"s_lshl_b32 s{S_T1}, s{S_R2}, 1")
            p(f"s_and_b32 s{S_T1}, s{S_T1}, 0xfffffffc")
            p(f"s_add_u32 s{S_T1}, s{S_T1}, {DBG_Q * 4}")
            p(f"v_mov_b32 v2, s{S_T1}")
            loads.append((None, f"global_load_dword v{V_POLL}, v2, s[{S_DBG}:{S_DBG+1}] sc1", "POLL"))
        gaps = [[] for _ in range(20)]
        for k, (pre, x, tag) in enumerate(loads):
            g = min(19, 1 + int(k * 18 / max(1, len(loads))))
            if pre: gaps[g - 1].append((pre, None))
            gaps[g].append((x, tag))
        for k, t in enumerate(dsr):
            free = [g for g in range(2 + 3 * k, 20) if not gaps[g]]
            gaps[free[0] if free else 19].append((t, None))
        val = []
        unp = []
        for cb in range(5):
            lo, hi = V_B2 + 2 * cb, V_B2 + 2 * cb + 1; r = BF + 4 * cb
            unp += [f"v_lshlrev_b32 v{r}, 16, v{lo}", f"v_and_b32 v{r+1}, 0xffff0000, v{lo}",
                    f"v_lshlrev_b32 v{r+2}, 16, v{hi}", f"v_and_b32 v{r+3}, 0xffff0000, v{hi}"]
        if m == NH:
            for b in range(4): val += [f"v_sub_f32 v{V_1G+2*b}, 1.0, v{V_G+b}", f"v_sub_f32 v{V_1G+2*b+1}, 1.0, v{V_G+b}"]
            val += unp[:12]
        if m == NH - 2:
            pass
        if NH < m <= NH + 4:
            b = m - NH - 1
            g1 = V_1G + 2 * b
            for cb in range(5):
                for h in range(4):
                    B_ = acc(ACCB, b, cb) + h
                    val.append(f"v_mul_f32 v{B_}, v{B_}, v{g1}")
        if m == NH:
            val += unp[12:]
            for bb in range(4): val += [f"v_mov_b32 v{V_GP+2*bb}, v{V_G+bb}", f"v_mov_b32 v{V_GP+2*bb+1}, v{V_G+bb}"]
        for k, t in enumerate(val):
            gaps[k % 20].append((t, None))
        for k in range(20):
            p(mf[k])
            for x, tag in gaps[k]:
                p(x)
                if tag: vq.issue(tag)
    return vq

def p2_final(p):
    L = V_LANE; T = 12
    for b in range(4):
        g = V_GP + 2 * b
        for cb in range(5):
            for h in (0, 2):
                A_ = acc(ACCA, b, cb) + h; B_ = acc(ACCB, b, cb) + h
                p(f"v_pk_fma_f32 v[{A_}:{A_+1}], v[{A_}:{A_+1}], v[{g}:{g+1}], v[{B_}:{B_+1}]")
    p("s_barrier")
    p(f"v_lshlrev_b32 v{T+2}, 4, v{L}")
    p(f"s_mul_i32 s{S_T0}, s{S_W}, 5120")
    p(f"v_add_u32 v{T+2}, s{S_T0}, v{T+2}")
    p(f"v_add_u32 v{T+3}, 40960, v{T+2}")
    for w in range(4):
        p(f"s_cmp_lg_u32 s{S_W}, {w}")
        p(f"s_cbranch_scc1 L_p2_red_skip{w}")
        for k in range(1, 4):
            d = (w + k) & 3
            for cb in range(5):
                a = acc(ACCA, d, cb)
                p(f"ds_write_b128 v{T+2+(d>>1)}, v[{a}:{a+3}] offset:{(d & 1) * 20480 + cb * 1024}")
        g1 = V_1G + 2 * w
        for cb in range(5):
            a = acc(ACCA, w, cb); bd = acc(ACCB, 0, cb); r = BF + 4 * cb
            for h in (0, 2):
                p(f"v_pk_fma_f32 v[{bd+h}:{bd+h+1}], v[{r+h}:{r+h+1}], v[{g1}:{g1+1}], v[{a+h}:{a+h+1}]")
        if w < 3: p("s_branch L_p2_red_done")
        p.label(f"L_p2_red_skip{w}")
    p.label("L_p2_red_done")
    p(f"v_lshlrev_b32 v{T+2}, 4, v{L}")
    p(f"s_mul_i32 s{S_T0}, s{S_W}, 20480")
    p(f"v_add_u32 v{T+2}, s{S_T0}, v{T+2}")
    for k in range(1, 4):
        p(f"s_add_u32 s{S_T1}, s{S_W}, {k}")
        p(f"s_and_b32 s{S_T1}, s{S_T1}, 3")
        p(f"s_mul_i32 s{S_T1}, s{S_T1}, 5120")
        p(f"v_add_u32 v{T+2+k}, s{S_T1}, v{T+2}")
    TR = 81920
    p(f"v_and_b32 v{T}, 15, v{L}")
    p(f"v_mul_u32_u24 v{T}, 176, v{T}")
    p(f"v_lshrrev_b32 v{T+1}, 4, v{L}")
    p(f"v_lshl_add_u32 v{T}, v{T+1}, 3, v{T}")
    p(f"s_mul_i32 s{S_T0}, s{S_W}, 2816")
    p(f"s_add_u32 s{S_T0}, s{S_T0}, {TR}")
    p(f"v_add_u32 v{T}, s{S_T0}, v{T}")
    p(f"s_lshl_b32 s{S_T1}, s{S_R2}, 6")
    p(f"s_lshl_b32 s{S_SA}, s{S_W}, 4")
    p(f"s_add_u32 s{S_T1}, s{S_T1}, s{S_SA}")
    p(f"s_mul_i32 s{S_T1}, s{S_T1}, 1280")
    p(f"s_mul_i32 s{S_SA}, s{S_N2}, 160")
    p(f"s_add_u32 s{S_T1}, s{S_T1}, s{S_SA}")
    for j in range(3):
        p(f"v_add_u32 v2, {64 * j}, v{L}")
        div_const(p, 3, 2, 10, 191)
        p(f"v_mul_u32_u24 v28, 10, v3")
        p(f"v_sub_u32 v28, v2, v28")
        p(f"v_mul_u32_u24 v{20+j}, 176, v3")
        p(f"v_lshl_add_u32 v{20+j}, v28, 4, v{20+j}")
        p(f"v_add_u32 v{20+j}, s{S_T0}, v{20+j}")
        p(f"v_mul_u32_u24 v3, 1280, v3")
        p(f"v_lshl_add_u32 v3, v28, 4, v3")
        p(f"v_add_u32 v{24+j}, s{S_T1}, v3")
        if j == 2:
            p(f"v_cmp_gt_u32 vcc, 160, v2")
            p(f"v_cndmask_b32 v{24+j}, -1, v{24+j}, vcc")
            p(f"v_cndmask_b32 v{20+j}, 0, v{20+j}, vcc")
    p("s_waitcnt lgkmcnt(0)")
    p("s_barrier")
    for k in range(1, 4):
        for cb in range(5):
            r = ACCA + 4 * ((k - 1) * 5 + cb)
            p(f"ds_read_b128 v[{r}:{r+3}], v{T+2+k} offset:{cb * 1024}")
    for k in range(1, 4):
        p(f"s_waitcnt lgkmcnt({5 * (3 - k)})")
        for cb in range(5):
            r = ACCA + 4 * ((k - 1) * 5 + cb); o = acc(ACCB, 0, cb)
            for h in (0, 2): p(f"v_pk_add_f32 v[{o+h}:{o+h+1}], v[{o+h}:{o+h+1}], v[{r+h}:{r+h+1}]")
    for cb in range(5):
        o = acc(ACCB, 0, cb); r = BF + 2 * cb
        p(f"v_cvt_pk_bf16_f32 v{r}, v{o}, v{o+1}")
        p(f"v_cvt_pk_bf16_f32 v{r+1}, v{o+2}, v{o+3}")
        p(f"ds_write_b64 v{T}, v[{r}:{r+1}] offset:{32 * cb}")
    p("s_waitcnt lgkmcnt(0)")
    for j in range(3):
        r = ACCA + 4 * j
        p(f"ds_read_b128 v[{r}:{r+3}], v{20+j}")
    for j in range(3):
        r = ACCA + 4 * j
        p(f"s_waitcnt lgkmcnt({2 - j})")
        p(f"buffer_store_dwordx4 v[{r}:{r+3}], v{24+j}, s[{S_OUT}:{S_OUT+3}], 0 offen {OUTSC}")
```

```python
from fz_common import *
import struct, math, os

QP = 480
XOFF = 64 * QP
STG = XOFF + 144 * 128

def q_cols(ch): return list(range(0, 8)) if ch == 0 else list(range(8, 15))
def q_halo(rh, ch): return {(0, 0): [5, 6], (1, 0): [7], (0, 1): [8, 9, 10, 11], (1, 1): [12, 13, 14]}[(rh, ch)]
def q_acc(ch, b, cb): return ACC + 4 * (b * 8 + q_cols(ch).index(cb))
def q_acc_halo(k): return ACC + 128 + 4 * k

def q_dmas():
    def W(q): return (f"s_add_u32 m0, s{S_DM}, {q * 4096}", f"buffer_load_dwordx4 v{V_DMA+q}, s[{S_WT}:{S_WT+3}], s{S_KW} offen lds")
    def X(q): return (f"s_add_u32 m0, s{S_DM}, {XOFF + q * 4096}", f"buffer_load_dwordx4 v{V_DMA+8+q}, s[{S_X}:{S_X+3}], s{S_KX} offen lds")
    FX = (f"s_add_u32 m0, s{S_DM}, s{S_FD}", f"buffer_load_dwordx4 v{V_DMA+7}, s[{S_FX}:{S_FX+3}], s{S_KF} offen lds")
    return [W(0), W(1), X(0), W(2), X(1), W(3)], [W(4), W(5), X(2), W(6), FX, X(3)]

def stage_offsets(kwstep, flex):
    out = [f"s_mul_i32 s{S_KW}, s{S_T0}, {kwstep}", f"s_lshl_b32 s{S_KX}, s{S_T0}, 7"]
    if flex: out.append(f"s_mul_i32 s{S_KF}, s{S_T0}, s{S_FSTEP}")
    return out

def stage_advance(stg, kwstep, flex):
    return [f"s_add_u32 s{S_DM}, s{S_RD}, s{S_WOFS}", f"s_add_u32 s{S_T0}, s{S_CNT}, {RING}",
            f"s_xor_b32 s{S_T0}, s{S_T0}, s{S_PAR}"] + stage_offsets(kwstep, flex)

def prologue_stage(k, stg, kwstep, flex):
    out = [f"s_xor_b32 s{S_T0}, s{S_PAR}, {k}"] + stage_offsets(kwstep, flex)
    if k: out.append(f"s_add_u32 s{S_DM}, s{S_WOFS}, {k * stg}")
    else: out.append(f"s_mov_b32 s{S_DM}, s{S_WOFS}")
    return out

def read_advance(stg, nw):
    out = [("s", f"s_add_u32 s{S_RD}, s{S_RD}, {stg}"), ("s", f"s_cmp_eq_u32 s{S_RD}, {RING * stg}"),
           ("s", f"s_cselect_b32 s{S_RD}, 0, s{S_RD}")]
    return out + addr_update(nw)

def addr_update(nw):
    out = [("a", f"v_add_u32 v{V_XA0}, s{S_RD}, v{V_XB0}"), ("a", f"v_add_u32 v{V_WA0}, s{S_RD}, v{V_WB0}")]
    if nw == 2: out.append(("a", f"v_add_u32 v{V_WA1}, s{S_RD}, v{V_WB1}"))
    out.append(("a", f"v_add_u32 v{V_XA1}, s{S_RD}, v{V_XB1}"))
    return out

def tail_sizes(flex):
    out = [("s", f"s_cmp_lt_u32 s{S_CNT}, {NSTG - RING}"), ("s", f"s_cselect_b32 s{S_WT+2}, s{S_WSZ}, 0"),
           ("s", f"s_cselect_b32 s{S_X+2}, s{S_XSZ}, 0")]
    if flex: out.append(("s", f"s_cselect_b32 s{S_FX+2}, s{S_FSZ}, 0"))
    return out

def q_reads(rh, ch, half, par):
    xa = V_XA0 if half == 0 else V_XA1
    xs = [(f"ds_read_b128 a[{A_X+20*par+4*b}:{A_X+20*par+4*b+3}], v{xa} offset:{(1 + 4 * rh + b) * 2048}", ("x", par, b)) for b in range(4)]
    xh = (f"ds_read_b128 a[{A_X+20*par+16}:{A_X+20*par+19}], v{xa}", ("x", par, 4))
    ws = []
    for k, cb in enumerate(q_cols(ch)):
        r = A_WF + 32 * par + 4 * k
        ws.append((f"ds_read_b64_tr_b16 a[{r}:{r+1}], v{V_WA0} offset:{32 * half * QP + cb * 32}", ("w", par, k)))
        ws.append((f"ds_read_b64_tr_b16 a[{r+2}:{r+3}], v{V_WA0} offset:{(32 * half + 8) * QP + cb * 32}", ("w", par, k)))
    first_halo = q_cols(ch).index(q_halo(rh, ch)[0])
    out = ws[:2] + xs
    for k in range(1, len(q_cols(ch))):
        if k == max(1, first_halo): out.append(xh)
        out += ws[2 * k:2 * k + 2]
    if xh not in out: out.insert(6, xh)
    return out

def q_mfmas(rh, ch, par):
    out = []; cols = q_cols(ch); halo = q_halo(rh, ch)
    def one(a, cb, xi):
        k = cols.index(cb)
        w = A_WF + 32 * par + 4 * k; x = A_X + 20 * par + 4 * xi
        needs = {("w", par, k), ("x", par, xi)}
        if cb < 10: return (f"v_mfma_f32_16x16x32_bf16 v[{a}:{a+3}], a[{w}:{w+3}], a[{x}:{x+3}], v[{a}:{a+3}]", needs)
        return (f"v_mfma_f32_16x16x32_bf16 v[{a}:{a+3}], a[{x}:{x+3}], a[{w}:{w+3}], v[{a}:{a+3}]", needs)
    for cb in cols:
        for b in range(4): out.append(one(q_acc(ch, b, cb), cb, b))
        if cb in halo: out.append(one(q_acc_halo(halo.index(cb)), cb, 4))
    return out

BAR_AT = int(os.environ.get("BAR_AT", "4"))
def gen_loop(p, label, nd_stage, mf, reads, dmas, stg, kwstep, flex, nw, hook=None, pf=None, wait=None):
    first, second = dmas
    if "nodma" in EXP: first, second = [], []
    if "noread" in EXP: reads = lambda a, b: []
    if "nodma" in EXP: nd_stage = 0
    if pf and "nodma" not in EXP:
        second = second[:3] + [(None, pf[0][1])] + second[3:]
        nd_stage += 1
    p.label(label)
    dsq = [tag for t, tag in reads(0, 0)]
    post = ([pf[1]] if pf and "nodma" not in EXP else []) + [("s", t) for t in stage_advance(stg, kwstep, flex)] + tail_sizes(flex) + read_advance(stg, nw)
    S, spill = schedule_step(mf(0), reads(1, 1), second, post)
    S.emit(p, dsq)
    def barrier_code(pp):
        if wait: wait(pp, nd_stage)
        else: pp(f"s_waitcnt vmcnt({nd_stage}) lgkmcnt(0)")
        if "nobar" not in EXP: pp("s_barrier")
        if hook: hook(pp)
        if "its" in EXP:
            for k, (it, st) in enumerate(((1, 1), (4, 2), (7, 4), (8, 5), (9, 6))):
                pp(f"s_cmp_lg_u32 s{S_CNT}, {it}")
                pp(f"s_cbranch_scc1 {label}_st{k}")
                fstamp(pp, st)
                pp.label(f"{label}_st{k}")
    post = [("s", f"s_add_u32 s{S_CNT}, s{S_CNT}, 1"), ("s", f"s_cmp_lt_u32 s{S_CNT}, {NSTG}")]
    S, rest = schedule_step(mf(1), reads(0, 0), first, post, pre_scalars=spill, ds_from=BAR_AT, dma_from=BAR_AT + 1)
    assert not rest
    S.emit(p, dsq, BAR_AT, barrier_code)
    p(f"s_cbranch_scc1 {label}")

def ex_off(m, B, c): return ((m * 9 + B) * 5 + c) * 512
QR, KR, VR = 160, 180, 210
def qreg(bb, c): return QR + 10 * bb + 2 * c
def kreg(B, c): return KR + 10 * B + 2 * c
def vreg(c, B): return VR + 6 * c + 2 * B
V_SEL = 4
V_EX, V_EX0 = 8, 9
V_ST = 10
V_NEG = 12
V_ST8 = 2

def pack(p, d, a):
    p(f"v_cvt_pk_bf16_f32 v{d}, v{a}, v{a+1}")
    p(f"v_cvt_pk_bf16_f32 v{d+1}, v{a+2}, v{a+3}")

def q_export_halo(p, rh, ch):
    for k, cb in enumerate(q_halo(rh, ch)):
        m, c = (1, cb - 5) if cb < 10 else (2, cb - 10)
        d = V_T + 2 * k
        pack(p, d, q_acc_halo(k))
        p(f"ds_write_b64 v{V_EX0}, v[{d}:{d+1}] offset:{ex_off(m, 0, c)}")

def q_exchange(p, ch):
    tmp = [V_T, V_T + 2, V_T + 4, V_T + 6]; ti = 0
    def exp(m, b, c, src): p(f"ds_write_b64 v{V_EX}, v[{src}:{src+1}] offset:{ex_off(m, 1 + b, c)}")
    if ch == 0:
        for b in (2, 3):
            for c in range(5):
                d = tmp[ti % 4]; ti += 1
                pack(p, d, q_acc(0, b, c)); exp(0, b, c, d)
        for b in (1, 2, 3):
            for c in range(3):
                d = kreg(b + 1, c) if b == 1 else tmp[ti % 4]; ti += 1
                pack(p, d, q_acc(0, b, 5 + c)); exp(1, b, c, d)
        p("s_waitcnt lgkmcnt(0)"); p("s_barrier")
        for c in range(3): p(f"ds_read_b64 v[{kreg(0,c)}:{kreg(0,c)+1}], v{V_EX} offset:{ex_off(1, 0, c)}")
        for B in range(3):
            for c in (3, 4): p(f"ds_read_b64 v[{kreg(B,c)}:{kreg(B,c)+1}], v{V_EX} offset:{ex_off(1, B, c)}")
        for c in range(5):
            for B in range(3): p(f"ds_read_b64 v[{vreg(c,B)}:{vreg(c,B)+1}], v{V_EX} offset:{ex_off(2, B, c)}")
        for c in range(3): pack(p, kreg(1, c), q_acc(0, 0, 5 + c))
        for b in (0, 1):
            for c in range(5): pack(p, qreg(b, c), q_acc(0, b, c))
    else:
        for b in (0, 1, 3):
            for c in (3, 4):
                d = kreg(b - 1, c) if b >= 1 else tmp[ti % 4]; ti += 1
                pack(p, d, q_acc(1, b, 5 + c)); exp(1, b, c, d)
            for c in range(5):
                d = vreg(c, b - 1) if b >= 1 else tmp[ti % 4]; ti += 1
                pack(p, d, q_acc(1, b, 10 + c)); exp(2, b, c, d)
        p("s_waitcnt lgkmcnt(0)"); p("s_barrier")
        for bb in range(2):
            for c in range(5): p(f"ds_read_b64 v[{qreg(bb,c)}:{qreg(bb,c)+1}], v{V_EX} offset:{ex_off(0, 3 + bb, c)}")
        for B in range(3):
            for c in range(3): p(f"ds_read_b64 v[{kreg(B,c)}:{kreg(B,c)+1}], v{V_EX} offset:{ex_off(1, 2 + B, c)}")
        for c in (3, 4): pack(p, kreg(1, c), q_acc(1, 2, 5 + c))
        for c in range(5): pack(p, vreg(c, 1), q_acc(1, 2, 10 + c))

M_ODD, M_G0, M_GE1, M_LE1, M_GE2, M_LE2, M_G3, M_CUR0, M_CUR1, M_NEG0, M_NEG1 = [S_MASK + 2 * k for k in range(11)]
def sp(x): return f"s[{x}:{x+1}]"
CEXP = struct.unpack("<I", struct.pack("<f", (DH ** -0.5) * math.log2(math.e)))[0]

def att_setup_scalar(p):
    L = V_LANE; T = V_T
    def m64(dst, hi, lo):
        p(f"s_mov_b32 s{dst}, {lo:#x}"); p(f"s_mov_b32 s{dst+1}, {hi:#x}")
    m64(M_ODD, 0xAAAAAAAA, 0xAAAAAAAA); m64(M_G0, 0, 0xFFFF); m64(M_GE1, 0xFFFFFFFF, 0xFFFF0000)
    m64(M_LE1, 0, 0xFFFFFFFF); m64(M_GE2, 0xFFFFFFFF, 0); m64(M_LE2, 0xFFFF, 0xFFFFFFFF); m64(M_G3, 0xFFFF0000, 0)
    p(f"v_and_b32 v{T}, 15, v{L}")
    p(f"v_and_b32 v{T+1}, 1, v{L}")
    p(f"v_lshrrev_b32 v{T+2}, 4, v{L}")
    p(f"v_lshl_add_u32 v{T+2}, v{T+2}, 2, v{T+1}")
    p(f"v_cmp_le_u32 {sp(M_CUR0)}, v{T+2}, v{T}")
    p(f"v_add_u32 v{T+2}, 2, v{T+2}")
    p(f"v_cmp_le_u32 {sp(M_CUR1)}, v{T+2}, v{T}")
    p(f"s_or_b32 s{S_T0}, s{S_J}, s{S_W}")
    p(f"s_cmp_eq_u32 s{S_T0}, 0")
    p(f"s_cselect_b64 {sp(M_NEG0)}, -1, 0")
    p(f"s_cselect_b64 {sp(M_NEG1)}, -1, 0")
    p(f"s_andn2_b64 {sp(M_NEG0)}, {sp(M_NEG0)}, {sp(M_CUR0)}")
    p(f"s_andn2_b64 {sp(M_NEG1)}, {sp(M_NEG1)}, {sp(M_CUR1)}")
    p(f"s_lshl_b32 s{S_T0}, s{S_I}, 1")
    p(f"s_add_u32 s{S_T0}, s{S_T0}, {KS_H}")
    p(f"s_lshl_b32 s{S_SO}, s{S_T0}, 10")
    p(f"s_add_u32 s{S_SO+1}, s{S_SO}, 1024")
    p(f"s_lshr_b32 s{S_T0}, s{S_I}, 1")
    p(f"s_add_u32 s{S_T0}, s{S_T0}, {KS_H + 16}")
    p(f"s_lshl_b32 s{S_T0}, s{S_T0}, 10")
    p(f"s_and_b32 s{S_T1}, s{S_I}, 1")
    p(f"s_lshl_b32 s{S_T1}, s{S_T1}, 9")
    p(f"s_add_u32 s{S_SO+2}, s{S_T0}, s{S_T1}")

def att_setup_vector(p):
    L = V_LANE; T = V_T
    p(f"v_mov_b32 v{T+3}, 0x0c0c0100"); p(f"v_mov_b32 v{T+4}, 0x01000c0c")
    p(f"v_cndmask_b32 v{T+3}, v{T+3}, v{T+4}, {sp(M_ODD)}")
    p(f"v_mov_b32 v{T+5}, 0x0c0c0302"); p(f"v_mov_b32 v{T+4}, 0x03020c0c")
    p(f"v_cndmask_b32 v{T+5}, v{T+5}, v{T+4}, {sp(M_ODD)}")
    p(f"v_mov_b32 v{T+4}, 0x0c0c0c0c")
    p(f"v_cndmask_b32 v{V_SEL+0}, v{T+3}, v{T+4}, {sp(M_CUR0)}")
    p(f"v_cndmask_b32 v{V_SEL+2}, v{T+4}, v{T+3}, {sp(M_CUR0)}")
    p(f"v_cndmask_b32 v{V_SEL+1}, v{T+5}, v{T+4}, {sp(M_CUR1)}")
    p(f"v_cndmask_b32 v{V_SEL+3}, v{T+4}, v{T+5}, {sp(M_CUR1)}")
    p(f"s_lshl_b32 s{S_T0}, s{S_J}, 3")
    p(f"s_lshl_b32 s{S_T1}, s{S_W}, 1")
    p(f"s_add_u32 s{S_T0}, s{S_T0}, s{S_T1}")
    p(f"s_mul_i32 s{S_T0}, s{S_T0}, {KS_T * 1024}")
    p(f"v_lshlrev_b32 v{V_ST}, 4, v{L}")
    p(f"v_add_u32 v{V_ST}, s{S_T0}, v{V_ST}")
    p(f"v_add_u32 v{V_ST+1}, {KS_T * 1024}, v{V_ST}")
    p(f"v_lshlrev_b32 v{V_ST8}, 3, v{L}")
    p(f"v_sub_u32 v{V_ST8}, v{V_ST}, v{V_ST8}")
    p(f"v_add_u32 v{V_ST8+1}, {KS_T * 1024}, v{V_ST8}")
    p(f"v_mov_b32 v{V_NEG}, 0xf149f2ca")
    p(f"s_mov_b32 s{S_T2}, {CEXP:#x}")

def cross4x2(p, A_, B_, op):
    seqs = []
    for a, b, c, d in (A_, B_):
        seqs.append([f"v_permlane32_swap_b32 v{a}, v{b}", f"v_permlane32_swap_b32 v{c}, v{d}",
                     f"{op} v{a}, v{a}, v{b}", f"{op} v{c}, v{c}, v{d}",
                     f"v_permlane16_swap_b32 v{a}, v{c}", f"{op} v{a}, v{a}, v{c}",
                     f"v_mov_b32 v{c}, v{a}", f"v_permlane16_swap_b32 v{a}, v{c}",
                     f"v_mov_b32 v{b}, v{a}", f"v_mov_b32 v{d}, v{c}",
                     f"v_permlane32_swap_b32 v{a}, v{b}", f"v_permlane32_swap_b32 v{c}, v{d}"])
    for x, y in zip(*seqs):
        p(x); p(y)

def attention(p):
    QX, SR, BR, MXR, SMR = 16, 48, 112, 128, 136
    PR, OR, PK = 16, 48, 112
    qmask = {0: [None, M_G0], 1: [M_GE1, M_LE1], 2: [M_GE2, M_LE2], 3: [M_G3, None]}
    U = [(bb, h) for bb in range(2) for h in range(4)]
    p("s_waitcnt lgkmcnt(0)")
    for u, (bb, h) in enumerate(U):
        for half in range(2):
            mk = qmask[h][half]
            for r in range(2):
                src = qreg(bb, h + half) + r; dst = QX + 4 * u + 2 * half + r
                if mk is None: p(f"v_mov_b32 v{dst}, v{src}")
                else: p(f"v_cndmask_b32 v{dst}, 0, v{src}, {sp(mk)}")
    for u, (bb, h) in enumerate(U):
        for pc in range(2):
            s = SR + 8 * u + 4 * pc; k = kreg(bb + pc, h)
            p(f"v_mfma_f32_16x16x32_bf16 v[{s}:{s+3}], v[{k}:{k+3}], v[{QX+4*u}:{QX+4*u+3}], 0")
    for u, (bb, h) in enumerate(U):
        s = SR + 8 * u; b0 = BR + 2 * u
        p(f"v_cndmask_b32 v{s}, v{s}, v{s+1}, {sp(M_ODD)}")
        p(f"v_cndmask_b32 v{s+2}, v{s+2}, v{s+3}, {sp(M_ODD)}")
        p(f"v_cndmask_b32 v{s+4}, v{s+4}, v{s+5}, {sp(M_ODD)}")
        p(f"v_cndmask_b32 v{s+6}, v{s+6}, v{s+7}, {sp(M_ODD)}")
        p(f"v_cndmask_b32 v{b0}, v{s}, v{s+4}, {sp(M_CUR0)}")
        p(f"v_cndmask_b32 v{b0+1}, v{s+2}, v{s+6}, {sp(M_CUR1)}")
        if bb == 0:
            p(f"v_cndmask_b32 v{b0}, v{b0}, v{V_NEG}, {sp(M_NEG0)}")
            p(f"v_cndmask_b32 v{b0+1}, v{b0+1}, v{V_NEG}, {sp(M_NEG1)}")
        p(f"v_max_f32 v{MXR+u}, v{b0}, v{b0+1}")
    cross4x2(p, [MXR + k for k in range(4)], [MXR + 4 + k for k in range(4)], "v_max_f32")
    for u in range(8):
        b0 = BR + 2 * u
        p(f"v_mul_f32 v{MXR+u}, s{S_T2}, v{MXR+u}")
        p(f"v_fma_f32 v{b0}, v{b0}, s{S_T2}, -v{MXR+u}")
        p(f"v_fma_f32 v{b0+1}, v{b0+1}, s{S_T2}, -v{MXR+u}")
    for u in range(8):
        b0 = BR + 2 * u
        p(f"v_exp_f32 v{b0}, v{b0}")
        p(f"v_exp_f32 v{b0+1}, v{b0+1}")
    for u in range(8): p(f"v_add_f32 v{SMR+u}, v{BR+2*u}, v{BR+2*u+1}")
    cross4x2(p, [SMR + k for k in range(4)], [SMR + 4 + k for k in range(4)], "v_add_f32")
    for u in range(8): p(f"v_rcp_f32 v{SMR+u}, v{SMR+u}")
    for u in range(8):
        b0 = BR + 2 * u
        p(f"v_mul_f32 v{b0}, v{b0}, v{SMR+u}")
        p(f"v_mul_f32 v{b0+1}, v{b0+1}, v{SMR+u}")
        p(f"v_cvt_pk_bf16_f32 v{MXR+u}, v{b0}, v{b0+1}")
    for u in range(8):
        for r in range(4): p(f"v_perm_b32 v{PR+4*u+r}, v{MXR+u}, v{MXR+u}, v{V_SEL+r}")
    pairs = [(0, 0), (1, 0), (1, 1), (2, 1), (2, 2), (3, 2), (3, 3), (4, 3)]
    for bb in range(2):
        for k, (c, h) in enumerate(pairs):
            o = OR + 4 * (8 * bb + k); v = vreg(c, bb); pr = PR + 4 * (4 * bb + h)
            p(f"v_mfma_f32_16x16x32_bf16 v[{o}:{o+3}], v[{v}:{v+3}], v[{pr}:{pr+3}], 0")
    sel = {1: M_GE1, 2: M_GE2, 3: M_G3}
    for bb in range(2):
        for c in range(5):
            ks = [k for k, (cc, h) in enumerate(pairs) if cc == c]
            d = PK + 2 * (5 * bb + c)
            pack(p, d, OR + 4 * (8 * bb + ks[0]))
            if len(ks) == 2:
                e = PK + 20 + 2 * (c & 1)
                pack(p, e, OR + 4 * (8 * bb + ks[1]))
                p(f"v_cndmask_b32 v{d}, v{d}, v{e}, {sp(sel[c])}")
                p(f"v_cndmask_b32 v{d+1}, v{d+1}, v{e+1}, {sp(sel[c])}")
            if c in (1, 3): p(f"buffer_store_dwordx4 v[{d-2}:{d+1}], v{V_ST+bb}, s[{S_AF}:{S_AF+3}], s{S_SO+(c>>1)} offen sc1")
            if c == 4: p(f"buffer_store_dwordx2 v[{d}:{d+1}], v{V_ST8+bb}, s[{S_AF}:{S_AF+3}], s{S_SO+2} offen sc1")

def lane_bases(p, T, wpitch, xoff):
    L = V_LANE
    p(f"v_and_b32 v{T}, 15, v{L}")
    p(f"v_lshrrev_b32 v{T+1}, 4, v{L}")
    p(f"v_lshrrev_b32 v{T+2}, 1, v{T}")
    p(f"v_xor_b32 v{T+2}, v{T+2}, v{T+1}")
    p(f"v_lshlrev_b32 v{T+2}, 4, v{T+2}")
    p(f"v_lshl_add_u32 v{V_XB0}, v{T}, 7, v{T+2}")
    p(f"v_add_u32 v{V_XB0}, {xoff}, v{V_XB0}")
    p(f"v_xor_b32 v{V_XB1}, 64, v{V_XB0}")
    p(f"v_lshrrev_b32 v{T+3}, 1, v{T+1}")
    p(f"v_lshlrev_b32 v{T+3}, 4, v{T+3}")
    p(f"v_and_b32 v{T+1}, 1, v{T+1}")
    p(f"v_lshl_add_u32 v{T+3}, v{T+1}, 2, v{T+3}")
    p(f"v_lshrrev_b32 v{T+2}, 2, v{T}")
    p(f"v_add_u32 v{T+3}, v{T+3}, v{T+2}")
    p(f"v_mul_u32_u24 v{T+3}, {wpitch}, v{T+3}")
    p(f"v_and_b32 v{T}, 3, v{L}")
    p(f"v_lshl_add_u32 v{V_WB0}, v{T}, 3, v{T+3}")

def x_dma_lane(p, dst, T, row0_sgpr):
    L = V_LANE
    p(f"s_and_b32 s{S_T3}, s{S_W}, 1")
    p(f"s_lshl_b32 s{S_T3}, s{S_T3}, 2")
    p(f"v_lshrrev_b32 v{T}, 4, v{L}")
    p(f"v_add_u32 v{T}, s{S_T3}, v{T}")
    p(f"v_xor_b32 v{T}, v{T}, v{L}")
    p(f"v_and_b32 v{T}, 7, v{T}")
    p(f"v_lshrrev_b32 v{T+1}, 3, v{L}")
    p(f"v_mul_u32_u24 v{T+1}, 1280, v{T+1}")
    p(f"v_lshl_add_u32 v{T+1}, v{T}, 4, v{T+1}")
    p(f"v_add_u32 v{dst}, s{row0_sgpr}, v{T+1}")

def q_dma_setup(p):
    L = V_LANE; T = ACC
    p(f"s_mul_i32 s{S_T2}, s{S_I}, 160")
    p(f"s_lshl_b32 s{S_T0}, s{S_W}, 6")
    p(f"v_add_u32 v{T+8}, s{S_T0}, v{L}")
    for q in range(8):
        if q: p(f"v_add_u32 v{T+8}, 256, v{T+8}")
        div_const(p, T + 1, T + 8, 30, 2111)
        p(f"v_mul_u32_u24 v{T+2}, 30, v{T+1}")
        p(f"v_sub_u32 v{T+2}, v{T+8}, v{T+2}")
        div_const(p, T + 3, T + 2, 10, 29)
        p(f"v_mul_u32_u24 v{T+4}, 1120, v{T+3}")
        p(f"v_lshl_add_u32 v{T+2}, v{T+2}, 4, v{T+4}")
        swap23(p, T + 3, T + 1, T + 4, 0x73)
        p(f"v_mul_u32_u24 v{T+3}, {3 * D * 2}, v{T+3}")
        p(f"v_add3_u32 v{V_DMA+q}, v{T+3}, v{T+2}, s{S_T2}")
    p(f"s_lshl_b32 s{S_T0}, s{S_J}, 7")
    p(f"s_lshl_b32 s{S_T1}, s{S_W}, 3")
    p(f"s_add_u32 s{S_T0}, s{S_T0}, s{S_T1}")
    p(f"s_sub_u32 s{S_T0}, s{S_T0}, 16")
    p(f"s_mul_i32 s{S_T0}, s{S_T0}, 1280")
    x_dma_lane(p, V_DMA + 8, T, S_T0)
    for q in range(1, 4): p(f"v_add_u32 v{V_DMA+8+q}, {q * 32 * 1280}, v{V_DMA+8}")
```

```python
import sys, os
sys.path.insert(0, "gen")
from fz_common import *
import fz_q as Q, fz_h as Hh, fz_p2 as P2, fz_pf as PF
import common

NAME = "gated_mix__sliding_local_dilated__dense_activation_squared_relu__prompt"
LDS_BYTES = 163840

class Sprinkle:
    def __init__(self, p, groups, every):
        self.p, self.q, self.every, self.n = p, list(groups), every, 0
    def __call__(self, text):
        self.p(text); self.n += 1
        if self.q and self.n % self.every == 0:
            for x in self.q.pop(0): self.p(x)
    def label(self, name): self.p.label(name)
    def flush(self):
        while self.q:
            for x in self.q.pop(0): self.p(x)

def phase2_entry_common(p, tag):
    p(f"s_load_dwordx2 s[{P2.S_B2S}:{P2.S_B2S+1}], s[0:1], {KA_B2}")
    P2.p2_empty_srds(p)
    p(f"s_add_u32 s{P2.S_GS}, s{S_AF}, {G_OFF}")
    p(f"s_addc_u32 s{P2.S_GS+1}, s{S_AF+1}, 0")
    p(f"s_mov_b32 s{P2.S_GS+2}, {G_BYTES}")
    p(f"s_mov_b32 s{P2.S_GS+3}, 0x20000")
    p("s_waitcnt lgkmcnt(0)")
    p(f"s_and_b32 s{P2.S_B2S+1}, s{P2.S_B2S+1}, 0xffff")
    p(f"s_mov_b32 s{P2.S_B2S+2}, {D * 2}")
    p(f"s_mov_b32 s{P2.S_B2S+3}, 0x20000")

def h_counter_offset(p, dst):
    p(f"s_lshl_b32 s{dst}, s{S_R2}, 1")
    p(f"s_and_b32 s{dst}, s{dst}, 0xfffffffc")
    if DBG_H: p(f"s_add_u32 s{dst}, s{dst}, {DBG_H * 4}")

V_PWH = 255
V_PWP, V_PH = 161, 14

def gen_role_q(p):
    L = V_LANE
    p.label("L_role_q")
    if "noq" in EXP: p("s_endpgm")
    Q.lane_bases(p, ACC, Q.QP, Q.XOFF)
    Q.q_dma_setup(p)
    p("s_waitcnt lgkmcnt(0)")
    build_srd(p, S_X, P_AX, S * D * 2)
    build_srd(p, S_WT, P_WQKV, D * 3 * D * 2)
    p(f"s_mov_b32 s{S_XSZ}, {S * D * 2}")
    p(f"s_mov_b32 s{S_WSZ}, {D * 3 * D * 2}")
    p(f"s_mov_b32 s{S_T0}, {28 * 1024}")
    p(f"s_mov_b32 s{S_T1}, {64 * 3 * D * 2}")
    p(f"s_cmp_ge_u32 s{S_W}, 2")
    p(f"s_cselect_b32 s{S_FX}, s{S_X}, s{S_WT}")
    p(f"s_cselect_b32 s{S_FX+1}, s{S_X+1}, s{S_WT+1}")
    p(f"s_cselect_b32 s{S_FX+2}, s{S_X+2}, s{S_WT+2}")
    p(f"s_mov_b32 s{S_FX+3}, 0x20000")
    p(f"s_cselect_b32 s{S_FSZ}, s{S_XSZ}, s{S_WSZ}")
    p(f"s_cselect_b32 s{S_FSTEP}, 128, s{S_T1}")
    p(f"s_cselect_b32 s{S_FD}, {Q.XOFF + 14 * 1024}, s{S_T0}")
    p("s_cselect_b64 vcc, -1, 0")
    p(f"v_add_u32 v{ACC}, {112 * 1280}, v{V_DMA+8}")
    p(f"v_cndmask_b32 v{V_DMA+7}, v{V_DMA+7}, v{ACC}, vcc")
    p(f"s_lshl_b32 s{S_WOFS}, s{S_W}, 10")
    for r in (S_RD, S_CNT): p(f"s_mov_b32 s{r}, 0")
    p(f"s_and_b32 s{S_PAR}, s{S_J}, {0 if 'nopar' in EXP else 1}")
    first, second = Q.q_dmas()
    for st in range(3):
        for t in Q.prologue_stage(st, Q.STG, 64 * 3 * D * 2, True): p(t)
        for m0, d in (first + second if st < 2 else first): p(m0); p(d)
    nwu = 0
    if USE_WU:
        p(f"s_lshl_b32 s{S_T2}, s{S_J}, 3")
        p(f"s_add_u32 s{S_T2}, s{S_T2}, s{S_I}")
        nwu = PF.warmup_linear(p, [(S_WT, D * 3 * D * 2, 128, S_T2), (S_X, S * D * 2, 128, S_T2)])
    npf = 0
    if USE_PF:
        PF.pf_setup(p, 0, S_AUX, S_AUX2)
        for k in range(PF.PF_DIST - 3):
            for kind, t in PF.pf_touch(S_AUX): p(t)
        npf = PF.PF_DIST - 3
    if STD: fstamp(p, 1)
    build_srd(p, S_AF, P_WS, AF_BYTES)
    build_srd(p, S_WP, P_WS, WP_BYTES, add=WP_OFF)
    build_srd(p, S_OUT, P_OUT, S * D * 2)
    p(f"s_mov_b64 s[{S_DBG}:{S_DBG+1}], s[{P_DBG}:{P_DBG+1}]")
    Q.att_setup_scalar(p)
    for r in range(ACC, ACC + 144, 2): p(f"v_mov_b64 v[{r}:{r+1}], 0")
    for k, t in Q.addr_update(1): p(t)
    p(f"s_waitcnt vmcnt({18 + npf + nwu})")
    p("s_barrier")
    if STD: fstamp(p, 2)
    q_alt = []
    def q_wait(w):
        def wait(pp, nd):
            if not nwu:
                pp(f"s_waitcnt vmcnt({nd}) lgkmcnt(0)"); return
            pp(f"s_cmp_eq_u32 s{S_CNT}, 0")
            pp(f"s_cbranch_scc1 L_q_alt{w}")
            pp(f"s_waitcnt vmcnt({nd}) lgkmcnt(0)")
            pp.label(f"L_q_alt_ret{w}")
            q_alt.append((w, nd))
        return wait
    for w in range(1, 4):
        p(f"s_cmp_eq_u32 s{S_W}, {w}")
        p(f"s_cbranch_scc1 L_q_wave{w}")
    def q_hook(pp):
        pp(f"s_cmp_eq_u32 s{S_CNT}, {QHOOK}")
        pp("s_cbranch_scc1 L_q_hook")
        pp.label("L_q_hook_ret")
    for w in range(4):
        rh, ch = w >> 1, w & 1
        p.label(f"L_q_wave{w}")
        for t, tag in Q.q_reads(rh, ch, 0, 0): p(t)
        Q.gen_loop(p, f"L_q_loop{w}", 12, lambda par: Q.q_mfmas(rh, ch, par), lambda half, par: Q.q_reads(rh, ch, half, par),
                   Q.q_dmas(), Q.STG, 64 * 3 * D * 2, True, 1, q_hook if w == 0 else None, PF.pf_touch(S_AUX) if USE_PF else None, q_wait(w))
        fstamp(p, 3)
        if "loopsonly" in EXP: p("s_branch L_diag_end")
        p("s_waitcnt vmcnt(0) lgkmcnt(0)")
        if w == 0:
            poll_check(p, DBG_WP * 4, V_PWP, 0, 128, "L_wp_pollq", barrier=False)
        p("s_barrier")
        P2.p2_addr_setup(p)
        p(f"v_lshlrev_b32 v{Q.V_EX0}, 3, v{L}")
        p(f"v_add_u32 v{Q.V_EX}, {rh * 10240}, v{Q.V_EX0}")
        Q.q_export_halo(p, rh, ch)
        p(f"s_branch L_q_ex{ch}")
    for w, nd in q_alt:
        p.label(f"L_q_alt{w}")
        p(f"s_waitcnt vmcnt({min(63, nd + nwu + npf)}) lgkmcnt(0)")
        p(f"s_branch L_q_alt_ret{w}")
    p.label("L_q_hook")
    p(f"v_mov_b32 v2, {DBG_WP * 4}")
    p(f"global_load_dword v{V_PWP}, v2, s[{S_DBG}:{S_DBG+1}] sc1")
    p("s_branch L_q_hook_ret")
    pre_all = P2.prefetch_list() + P2.lds_prefetch_list()
    n_ex = N_EX
    for ch in (0, 1):
        p.label(f"L_q_ex{ch}")
        sp = Sprinkle(p, pre_all[:n_ex], SPRINKLE_Q)
        Q.q_exchange(sp, ch)
        sp.flush()
        if ch == 0: p("s_branch L_q_att")
    p.label("L_q_att")
    p(f"s_mov_b32 s{S_ROLE}, 0")
    if "mid" in EXP: fstamp(p, 1)
    phase2_entry_common(p, "q")
    h_counter_offset(p, S_T1)
    poll_issue(p, f"s{S_T1}", V_PH, "L_q_hpoll_iss")
    P2.lds_setup(p)
    Q.att_setup_vector(p)
    p("s_waitcnt lgkmcnt(0)")
    p("s_barrier")
    if "mid" in EXP: fstamp(p, 2)
    sp = Sprinkle(p, pre_all[n_ex:], SPRINKLE_Q)
    Q.attention(sp)
    sp.flush()
    if "mid" in EXP: fstamp(p, 4)
    P2.p2_zero(p)
    h_counter_offset(p, S_T1)
    poll_check(p, f"s{S_T1}", V_PH, min(63, len(pre_all) - n_ex + 6), 8, "L_q_hpoll")
    if "mid" in EXP: fstamp(p, 5)
    p("s_branch L_phase2")

def gen_role_h(p):
    L = V_LANE
    p.label("L_role_h")
    if "noh" in EXP: p("s_endpgm")
    Hh.h_setup(p)
    p(f"s_mov_b32 s{S_FD}, s{S_T2}")
    p("s_waitcnt lgkmcnt(0)")
    build_srd(p, S_X, P_AX, S * D * 2)
    build_srd(p, S_WT, P_W1, D * F * 2)
    p(f"s_mov_b32 s{S_XSZ}, {S * D * 2}")
    p(f"s_mov_b32 s{S_WSZ}, {D * F * 2}")
    p(f"s_lshl_b32 s{S_WOFS}, s{S_W}, 10")
    for r in (S_RD, S_CNT): p(f"s_mov_b32 s{r}, 0")
    p(f"s_and_b32 s{S_PAR}, s{S_J}, {0 if 'nopar' in EXP else 1}")
    first, second = Hh.h_dmas()
    for st in range(2):
        for t in Q.prologue_stage(st, Hh.HSTG, 64 * F * 2, False): p(t)
        for m0, d in first + second: p(m0); p(d)
    for t in Q.prologue_stage(2, Hh.HSTG, 64 * F * 2, False): p(t)
    for m0, d in first: p(m0); p(d)
    nwu = 0
    if USE_WU:
        p(f"s_lshl_b32 s{S_T2}, s{S_J}, 3")
        p(f"s_add_u32 s{S_T2}, s{S_T2}, s{S_I}")
        build_srd(p, S_AUX, P_W2, F * D * 2)
        build_srd(p, S_AUX2, P_WO, D * D * 2)
        nwu = PF.warmup_linear(p, [(S_WT, D * F * 2, 128, S_T2), (S_AUX, F * D * 2, 128, S_T2), (S_AUX2, D * D * 2, 128, S_T2)])
    if STD: fstamp(p, 1)
    build_srd(p, S_AUX, P_B1, F * 2)
    build_srd(p, S_AUX2, P_GW, D * 2)
    Hh.h_side_issue(p, "")
    if "norp" in EXP: p(f"s_mov_b32 s{Hh.S_RU}, 999")
    else: Hh.repack_address(p)
    build_srd(p, S_AF, P_WS, AF_BYTES)
    build_srd(p, S_WP, P_WS, WP_BYTES, add=WP_OFF)
    build_srd(p, S_OUT, P_OUT, S * D * 2)
    p(f"s_mov_b64 s[{S_DBG}:{S_DBG+1}], s[{P_DBG}:{P_DBG+1}]")
    npf = 0
    if USE_PF:
        PF.pf_setup(p, 1, H_PFS, S_FSTEP, S_FD)
        for k in range(PF.PF_DIST - 3):
            for kind, t in PF.pf_touch(H_PFS): p(t)
        npf = PF.PF_DIST - 3
    Hh.repack_prepare(p)
    if "norp" not in EXP and "norpw" not in EXP: Hh.repack_warm(p)
    for r in range(ACC, ACC + 112, 2): p(f"v_mov_b64 v[{r}:{r+1}], 0")
    for k, t in Q.addr_update(2): p(t)
    p(f"s_cmp_lt_u32 s{Hh.S_RU}, {KS_T * 5}")
    p(f"s_cselect_b32 s{S_ALTM}, {1 << (HOOK_FIN + 1)}, 0")
    if nwu: p(f"s_or_b32 s{S_ALTM}, s{S_ALTM}, 1")
    nrw = 0 if 'norp' in EXP or 'norpw' in EXP else 1
    p(f"s_waitcnt vmcnt({16 + npf + nwu + nrw})")
    p("s_barrier")
    if STD: fstamp(p, 2)
    p(f"s_mov_b32 s{S_HOOKM}, {(1 << HOOK_ISS) | (1 << HOOK_FIN) | ((1 << HOOK_SIG) if HOOK_SIG < NSTG else 0)}")
    for t, tag in Hh.h_reads(0, 0): p(t)
    nds = [0]
    def hook(pp):
        pp(f"s_bitcmp1_b32 s{S_HOOKM}, s{S_CNT}")
        pp("s_cbranch_scc1 L_h_hook")
        pp.label("L_h_hook_ret")
    def wait(pp, nd):
        nds[0] = nd
        pp(f"s_bitcmp1_b32 s{S_ALTM}, s{S_CNT}")
        pp("s_cbranch_scc1 L_h_alt")
        pp(f"s_waitcnt vmcnt({nd}) lgkmcnt(0)")
        pp.label("L_h_alt_ret")
    Q.gen_loop(p, "L_h_loop", 11, Hh.h_mfmas, Hh.h_reads, Hh.h_dmas(), Hh.HSTG, 64 * F * 2, False, 2, hook,
               PF.pf_touch(H_PFS) if USE_PF else None, wait)
    fstamp(p, 3)
    if "loopsonly" in EXP: p("s_branch L_diag_end")
    p("s_waitcnt vmcnt(0)")
    if HOOK_SIG >= NSTG:
        p("s_barrier")
        signal(p, DBG_WP * 4, "L_h_wp_sig2")
    poll_issue(p, DBG_WP * 4, V_PWH, "L_h_wp_iss")
    build_srd(p, S_AUX2, P_AX, S * D * 2)
    Hh.h_gate_issue(p)
    p("s_waitcnt lgkmcnt(0)")
    p(f"s_add_u32 s{P2.S_GS}, s{S_AF}, {G_OFF}")
    p(f"s_addc_u32 s{P2.S_GS+1}, s{S_AF+1}, 0")
    p(f"s_mov_b32 s{P2.S_GS+2}, {G_BYTES}")
    p(f"s_mov_b32 s{P2.S_GS+3}, 0x20000")
    p(f"s_cmp_ge_u32 s{S_W}, 2")
    p("s_cbranch_scc1 L_h_epi1")
    for ch in (0, 1):
        if ch == 1: p.label("L_h_epi1")
        def wp_check(pp):
            poll_check(pp, DBG_WP * 4, V_PWH, 17, 128, "L_wp_pollh", barrier=False)
        Hh.h_epilogue(p, ch, S_FD, wp_check if ch == 0 else None)
        p("s_branch L_h_done")
    p.label("L_h_alt")
    if nwu:
        p(f"s_cmp_lg_u32 s{S_CNT}, 0")
        p("s_cbranch_scc1 L_h_alt_rp")
        p(f"s_waitcnt vmcnt({min(63, nds[0] + nwu + npf + nrw)}) lgkmcnt(0)")
        p("s_branch L_h_alt_ret")
        p.label("L_h_alt_rp")
    p(f"s_waitcnt vmcnt({nds[0] + 8}) lgkmcnt(0)")
    p("s_branch L_h_alt_ret")
    p.label("L_h_hook")
    p(f"s_cmp_eq_u32 s{S_CNT}, {HOOK_SIG}")
    p("s_cbranch_scc1 L_h_hook_sig")
    p(f"s_cmp_eq_u32 s{S_CNT}, {HOOK_FIN}")
    p("s_cbranch_scc1 L_h_hook_fin")
    if "rpst" in EXP: fstamp(p, 1)
    Hh.repack_issue(p, "")
    if "rpst" in EXP: fstamp(p, 2)
    p("s_branch L_h_hook_ret")
    p.label("L_h_hook_fin")
    if "rpst" in EXP: fstamp(p, 4)
    Hh.repack_finish(p, "")
    if "rpst" in EXP: fstamp(p, 5)
    p("s_branch L_h_hook_ret")
    p.label("L_h_hook_sig")
    signal(p, DBG_WP * 4, "L_h_wp_sig")
    p("s_branch L_h_hook_ret")
    p.label("L_h_done")
    p("s_waitcnt vmcnt(12)")
    Hh.h_gate(p, P2.S_GS)
    if "mid" in EXP: fstamp(p, 4)
    p(f"s_mov_b32 s{S_ROLE}, 1")
    P2.p2_addr_setup(p)
    pre = P2.prefetch_list()
    npre = N_HPRE
    for g in pre[:npre]:
        for x in g: p(x)
    p(f"s_waitcnt vmcnt({npre})")
    if "mid" in EXP: fstamp(p, 5)
    p("s_barrier")
    p(f"s_lshl_b32 s{S_T0}, s{S_J}, 2")
    p(f"s_add_u32 s{S_T0}, s{S_T0}, {DBG_H * 4}")
    signal(p, f"s{S_T0}", "L_h_sig")
    phase2_entry_common(p, "h")
    if "mid" in EXP: fstamp(p, 1)
    P2.lds_setup(p)
    for g in pre[npre:] + P2.lds_prefetch_list():
        for x in g: p(x)
    P2.p2_zero(p)
    if "mid" in EXP: fstamp(p, 2)
    h_counter_offset(p, S_T1)
    wait_counter(p, f"s{S_T1}", 8, "L_p2_h_poll")

N_HPRE = int(os.environ.get("N_HPRE", "0"))
QHOOK = int(os.environ.get('QHOOK', '9'))
USE_PF = "nopf" not in EXP
USE_WU = "wu" in EXP
STD = "mid" not in EXP and "its" not in EXP and "rpst" not in EXP
N_EX = int(os.environ.get("N_EX", "18"))
S_ALTM = 59
HOOK_ISS, HOOK_FIN, HOOK_SIG = [int(x) for x in os.environ.get('HOOKS', '1,4,6').split(',')]
S_HOOKM = 57
H_PFS = 84
SPRINKLE_Q, SPRINKLE_H = int(os.environ.get('SPRQ', '7')), 9
CODE_BYTES = 30720
MIXED = "mixed" in EXP
P2MAP = os.environ.get("P2MAP", "B")

def gen_fused(p, name):
    kernel_head(p, name)
    p("s_cmp_ge_u32 s2, 256")
    p("s_cbranch_scc1 L_end")
    fstamp(p, 0)
    p(f"s_load_dwordx4 s[{P_AX}:{P_AX+3}], s[0:1], {KA_AX}")
    p(f"s_load_dwordx2 s[{P_WO}:{P_WO+1}], s[0:1], {KA_WO}")
    p(f"s_load_dwordx4 s[{P_W1}:{P_W1+3}], s[0:1], {KA_W1}")
    p(f"s_load_dwordx4 s[{P_W2}:{P_W2+3}], s[0:1], {KA_W2}")
    p(f"s_load_dwordx4 s[{P_GW}:{P_GW+3}], s[0:1], {KA_GW}")
    p(f"s_load_dwordx4 s[{P_DBG}:{P_DBG+3}], s[0:1], {KA_DBG}")
    p(f"v_and_b32 v{V_LANE}, 63, v0")
    p("v_lshrrev_b32 v2, 6, v0")
    p("s_and_b32 s3, s2, 7")
    p(f"s_lshr_b32 s{S_T1}, s2, 3")
    p(f"v_readfirstlane_b32 s{S_W}, v2")
    if MIXED:
        p(f"s_lshr_b32 s{S_J}, s3, 1")
        p(f"s_lshl_b32 s{S_J}, s{S_J}, 2")
        p(f"s_lshr_b32 s{S_T0}, s{S_T1}, 2")
        p(f"s_and_b32 s{S_T0}, s{S_T0}, 3")
        p(f"s_add_u32 s{S_J}, s{S_J}, s{S_T0}")
        p(f"s_and_b32 s{S_I}, s3, 1")
    else:
        p(f"s_and_b32 s{S_T2}, s3, 3")
        p(f"s_lshr_b32 s{S_J}, s{S_T2}, 1")
        p(f"s_lshl_b32 s{S_J}, s{S_J}, 3")
        p(f"s_lshr_b32 s{S_T0}, s{S_T1}, 2")
        p(f"s_add_u32 s{S_J}, s{S_J}, s{S_T0}")
        p(f"s_and_b32 s{S_I}, s{S_T2}, 1")
    p(f"s_lshl_b32 s{S_I}, s{S_I}, 2")
    p(f"s_and_b32 s{S_T0}, s{S_T1}, 3")
    p(f"s_add_u32 s{S_I}, s{S_I}, s{S_T0}")
    if P2MAP == "A":
        p(f"s_lshr_b32 s{S_R2}, s{S_T1}, 3")
        p(f"s_lshl_b32 s{S_T0}, s3, 2")
        p(f"s_add_u32 s{S_R2}, s{S_R2}, s{S_T0}")
        p(f"s_and_b32 s{S_N2}, s{S_T1}, 7")
    else:
        p(f"s_lshr_b32 s{S_R2}, s3, 1")
        p(f"s_lshl_b32 s{S_R2}, s{S_R2}, 3")
        p(f"s_lshr_b32 s{S_T0}, s{S_T1}, 2")
        p(f"s_add_u32 s{S_R2}, s{S_R2}, s{S_T0}")
        p(f"s_and_b32 s{S_N2}, s3, 1")
        p(f"s_lshl_b32 s{S_N2}, s{S_N2}, 2")
        p(f"s_and_b32 s{S_T0}, s{S_T1}, 3")
        p(f"s_add_u32 s{S_N2}, s{S_N2}, s{S_T0}")
    if "nopfc" not in EXP: PF.pf_code(p, name, f"L_end-{name}")
    if MIXED: p(f"s_cmp_ge_u32 s2, 128")
    else: p("s_cmp_ge_u32 s3, 4")
    p("s_cbranch_scc1 L_role_h")
    gen_role_q(p)
    gen_role_h(p)
    p.label("L_phase2")
    if "mid" in EXP: fstamp(p, 6)
    P2.p2_main(p, 6)
    if STD: fstamp(p, 6)
    P2.p2_final(p)
    p.label("L_diag_end")
    if "dbgtime" in EXP:
        p("s_waitcnt vmcnt(0)"); fstamp(p, 7)
    if common.DIAG: flush_stamps(p)
    p.label("L_end")
    p("s_endpgm")
    p(KD.format(name=name, vgpr=512, sgpr=102, acc=256))

def flush_stamps(p):
    p("s_waitcnt vmcnt(0) lgkmcnt(0)")
    p(f"{'s_memtime' if common.CYC else 's_memrealtime'} s[16:17]")
    p("s_waitcnt lgkmcnt(0)")
    p(f"s_add_u32 s20, s{S_AF}, {common.STAMP_OFF}")
    p(f"s_addc_u32 s21, s{S_AF+1}, 0")
    p("s_mov_b32 s22, 0x100000"); p("s_mov_b32 s23, 0x20000")
    p(f"s_lshl_b32 s24, s2, 2"); p(f"s_add_u32 s24, s24, s{S_W}"); p("s_lshl_b32 s24, s24, 7")
    for i, r in enumerate(STAMPS + [16]):
        p(f"v_mov_b32 v2, s{r}"); p(f"v_mov_b32 v3, s{r+1}"); p("v_mov_b32 v4, s24")
        p(f"buffer_store_dwordx2 v[2:3], v4, s[20:23], 0 offen offset:{8 * i}")
        p("s_waitcnt vmcnt(0)")

def build(path):
    p = Prog()
    head = open("cdna_kernels/%s.s.ref" % NAME).read().split("; Override launch geometry")[0].rstrip("\n").split("\n")
    head.append("; Override launch geometry by editing the next line (default: block=256,")
    head.append("; @launch grid=(256,1,1) block=(256,1,1) lds=%d" % LDS_BYTES)
    p('.amdgcn_target "amdgcn-amd-amdhsa--gfx950"'); p(".text")
    gen_fused(p, NAME + "_kernel")
    body, n = pad_hazards_fast(p.lines)
    open(path, "w").write("\n".join(head + body) + "\n")
    print("written", path, "nops", n, "lines", len(body))

if __name__ == "__main__":
    args = sys.argv[1:]
    if "--diag" in args: common.DIAG = True; args.remove("--diag")
    if "--cyc" in args: common.CYC = True; args.remove("--cyc")
    build(args[0] if args else "fused.s")
```

```python
import sys, os
sys.path.insert(0, "gen")
from fz_common import *
import fz_q as Q, fz_h as Hh, fz_p2 as P2, fz_pf as PF
import common

NAME = "gated_mix__sliding_local_dilated__dense_activation_squared_relu__prompt"
LDS_BYTES = 163840

class Sprinkle:
    def __init__(self, p, groups, every):
        self.p, self.q, self.every, self.n = p, list(groups), every, 0
    def __call__(self, text):
        self.p(text); self.n += 1
        if self.q and self.n % self.every == 0:
            for x in self.q.pop(0): self.p(x)
    def label(self, name): self.p.label(name)
    def flush(self):
        while self.q:
            for x in self.q.pop(0): self.p(x)

def phase2_entry_common(p, tag):
    p(f"s_load_dwordx2 s[{P2.S_B2S}:{P2.S_B2S+1}], s[0:1], {KA_B2}")
    P2.p2_empty_srds(p)
    p(f"s_add_u32 s{P2.S_GS}, s{S_AF}, {G_OFF}")
    p(f"s_addc_u32 s{P2.S_GS+1}, s{S_AF+1}, 0")
    p(f"s_mov_b32 s{P2.S_GS+2}, {G_BYTES}")
    p(f"s_mov_b32 s{P2.S_GS+3}, 0x20000")
    p("s_waitcnt lgkmcnt(0)")
    p(f"s_and_b32 s{P2.S_B2S+1}, s{P2.S_B2S+1}, 0xffff")
    p(f"s_mov_b32 s{P2.S_B2S+2}, {D * 2}")
    p(f"s_mov_b32 s{P2.S_B2S+3}, 0x20000")

def h_counter_offset(p, dst):
    p(f"s_lshl_b32 s{dst}, s{S_R2}, 1")
    p(f"s_and_b32 s{dst}, s{dst}, 0xfffffffc")
    if DBG_H: p(f"s_add_u32 s{dst}, s{dst}, {DBG_H * 4}")

V_PWH = 255
V_PWP, V_PH = 161, 14

def gen_role_q(p):
    L = V_LANE
    p.label("L_role_q")
    if "noq" in EXP: p("s_endpgm")
    Q.lane_bases(p, ACC, Q.QP, Q.XOFF)
    Q.q_dma_setup(p)
    p("s_waitcnt lgkmcnt(0)")
    build_srd(p, S_X, P_AX, S * D * 2)
    build_srd(p, S_WT, P_WQKV, D * 3 * D * 2)
    p(f"s_mov_b32 s{S_XSZ}, {S * D * 2}")
    p(f"s_mov_b32 s{S_WSZ}, {D * 3 * D * 2}")
    p(f"s_mov_b32 s{S_T0}, {28 * 1024}")
    p(f"s_mov_b32 s{S_T1}, {64 * 3 * D * 2}")
    p(f"s_cmp_ge_u32 s{S_W}, 2")
    p(f"s_cselect_b32 s{S_FX}, s{S_X}, s{S_WT}")
    p(f"s_cselect_b32 s{S_FX+1}, s{S_X+1}, s{S_WT+1}")
    p(f"s_cselect_b32 s{S_FX+2}, s{S_X+2}, s{S_WT+2}")
    p(f"s_mov_b32 s{S_FX+3}, 0x20000")
    p(f"s_cselect_b32 s{S_FSZ}, s{S_XSZ}, s{S_WSZ}")
    p(f"s_cselect_b32 s{S_FSTEP}, 128, s{S_T1}")
    p(f"s_cselect_b32 s{S_FD}, {Q.XOFF + 14 * 1024}, s{S_T0}")
    p("s_cselect_b64 vcc, -1, 0")
    p(f"v_add_u32 v{ACC}, {112 * 1280}, v{V_DMA+8}")
    p(f"v_cndmask_b32 v{V_DMA+7}, v{V_DMA+7}, v{ACC}, vcc")
    p(f"s_lshl_b32 s{S_WOFS}, s{S_W}, 10")
    for r in (S_RD, S_CNT): p(f"s_mov_b32 s{r}, 0")
    p(f"s_and_b32 s{S_PAR}, s{S_J}, {0 if 'nopar' in EXP else 1}")
    first, second = Q.q_dmas()
    for st in range(3):
        for t in Q.prologue_stage(st, Q.STG, 64 * 3 * D * 2, True): p(t)
        for m0, d in (first + second if st < 2 else first): p(m0); p(d)
    nwu = 0
    if USE_WU:
        p(f"s_lshl_b32 s{S_T2}, s{S_J}, 3")
        p(f"s_add_u32 s{S_T2}, s{S_T2}, s{S_I}")
        nwu = PF.warmup_linear(p, [(S_WT, D * 3 * D * 2, 128, S_T2), (S_X, S * D * 2, 128, S_T2)])
    npf = 0
    if USE_PF:
        PF.pf_setup(p, 0, S_AUX, S_AUX2)
        for k in range(PF.PF_DIST - 3):
            for kind, t in PF.pf_touch(S_AUX): p(t)
        npf = PF.PF_DIST - 3
    if STD: fstamp(p, 1)
    build_srd(p, S_AF, P_WS, AF_BYTES)
    build_srd(p, S_WP, P_WS, WP_BYTES, add=WP_OFF)
    build_srd(p, S_OUT, P_OUT, S * D * 2)
    p(f"s_mov_b64 s[{S_DBG}:{S_DBG+1}], s[{P_DBG}:{P_DBG+1}]")
    Q.att_setup_scalar(p)
    for r in range(ACC, ACC + 144, 2): p(f"v_mov_b64 v[{r}:{r+1}], 0")
    for k, t in Q.addr_update(1): p(t)
    p(f"s_waitcnt vmcnt({18 + npf + nwu})")
    p("s_barrier")
    if STD: fstamp(p, 2)
    q_alt = []
    def q_wait(w):
        def wait(pp, nd):
            if not nwu:
                pp(f"s_waitcnt vmcnt({nd}) lgkmcnt(0)"); return
            pp(f"s_cmp_eq_u32 s{S_CNT}, 0")
            pp(f"s_cbranch_scc1 L_q_alt{w}")
            pp(f"s_waitcnt vmcnt({nd}) lgkmcnt(0)")
            pp.label(f"L_q_alt_ret{w}")
            q_alt.append((w, nd))
        return wait
    for w in range(1, 4):
        p(f"s_cmp_eq_u32 s{S_W}, {w}")
        p(f"s_cbranch_scc1 L_q_wave{w}")
    def q_hook(pp):
        pp(f"s_cmp_eq_u32 s{S_CNT}, {QHOOK}")
        pp("s_cbranch_scc1 L_q_hook")
        pp.label("L_q_hook_ret")
    for w in range(4):
        rh, ch = w >> 1, w & 1
        p.label(f"L_q_wave{w}")
        for t, tag in Q.q_reads(rh, ch, 0, 0): p(t)
        Q.gen_loop(p, f"L_q_loop{w}", 12, lambda par: Q.q_mfmas(rh, ch, par), lambda half, par: Q.q_reads(rh, ch, half, par),
                   Q.q_dmas(), Q.STG, 64 * 3 * D * 2, True, 1, q_hook if w == 0 else None, PF.pf_touch(S_AUX) if USE_PF else None, q_wait(w))
        fstamp(p, 3)
        if "loopsonly" in EXP: p("s_branch L_diag_end")
        p("s_waitcnt vmcnt(0) lgkmcnt(0)")
        if w == 0:
            poll_check(p, DBG_WP * 4, V_PWP, 0, 128, "L_wp_pollq", barrier=False)
        p("s_barrier")
        P2.p2_addr_setup(p)
        p(f"v_lshlrev_b32 v{Q.V_EX0}, 3, v{L}")
        p(f"v_add_u32 v{Q.V_EX}, {rh * 10240}, v{Q.V_EX0}")
        Q.q_export_halo(p, rh, ch)
        p(f"s_branch L_q_ex{ch}")
    for w, nd in q_alt:
        p.label(f"L_q_alt{w}")
        p(f"s_waitcnt vmcnt({min(63, nd + nwu + npf)}) lgkmcnt(0)")
        p(f"s_branch L_q_alt_ret{w}")
    p.label("L_q_hook")
    p(f"v_mov_b32 v2, {DBG_WP * 4}")
    p(f"global_load_dword v{V_PWP}, v2, s[{S_DBG}:{S_DBG+1}] sc1")
    p("s_branch L_q_hook_ret")
    pre_all = P2.prefetch_list() + P2.lds_prefetch_list()
    n_ex = N_EX
    for ch in (0, 1):
        p.label(f"L_q_ex{ch}")
        sp = Sprinkle(p, pre_all[:n_ex], SPRINKLE_Q)
        Q.q_exchange(sp, ch)
        sp.flush()
        if ch == 0: p("s_branch L_q_att")
    p.label("L_q_att")
    p(f"s_mov_b32 s{S_ROLE}, 0")
    if "mid" in EXP: fstamp(p, 1)
    phase2_entry_common(p, "q")
    h_counter_offset(p, S_T1)
    poll_issue(p, f"s{S_T1}", V_PH, "L_q_hpoll_iss")
    P2.lds_setup(p)
    Q.att_setup_vector(p)
    p("s_waitcnt lgkmcnt(0)")
    p("s_barrier")
    if "mid" in EXP: fstamp(p, 2)
    sp = Sprinkle(p, pre_all[n_ex:], SPRINKLE_Q)
    Q.attention(sp)
    sp.flush()
    if "mid" in EXP: fstamp(p, 4)
    P2.p2_zero(p)
    h_counter_offset(p, S_T1)
    poll_check(p, f"s{S_T1}", V_PH, min(63, len(pre_all) - n_ex + 6), 8, "L_q_hpoll")
    if "mid" in EXP: fstamp(p, 5)
    p("s_branch L_phase2")

def gen_role_h(p):
    L = V_LANE
    p.label("L_role_h")
    if "noh" in EXP: p("s_endpgm")
    Hh.h_setup(p)
    p(f"s_mov_b32 s{S_FD}, s{S_T2}")
    p("s_waitcnt lgkmcnt(0)")
    build_srd(p, S_X, P_AX, S * D * 2)
    build_srd(p, S_WT, P_W1, D * F * 2)
    p(f"s_mov_b32 s{S_XSZ}, {S * D * 2}")
    p(f"s_mov_b32 s{S_WSZ}, {D * F * 2}")
    p(f"s_lshl_b32 s{S_WOFS}, s{S_W}, 10")
    for r in (S_RD, S_CNT): p(f"s_mov_b32 s{r}, 0")
    p(f"s_and_b32 s{S_PAR}, s{S_J}, {0 if 'nopar' in EXP else 1}")
    first, second = Hh.h_dmas()
    for st in range(2):
        for t in Q.prologue_stage(st, Hh.HSTG, 64 * F * 2, False): p(t)
        for m0, d in first + second: p(m0); p(d)
    for t in Q.prologue_stage(2, Hh.HSTG, 64 * F * 2, False): p(t)
    for m0, d in first: p(m0); p(d)
    nwu = 0
    if USE_WU:
        p(f"s_lshl_b32 s{S_T2}, s{S_J}, 3")
        p(f"s_add_u32 s{S_T2}, s{S_T2}, s{S_I}")
        build_srd(p, S_AUX, P_W2, F * D * 2)
        build_srd(p, S_AUX2, P_WO, D * D * 2)
        nwu = PF.warmup_linear(p, [(S_WT, D * F * 2, 128, S_T2), (S_AUX, F * D * 2, 128, S_T2), (S_AUX2, D * D * 2, 128, S_T2)])
    if STD: fstamp(p, 1)
    build_srd(p, S_AUX, P_B1, F * 2)
    build_srd(p, S_AUX2, P_GW, D * 2)
    Hh.h_side_issue(p, "")
    if "norp" in EXP: p(f"s_mov_b32 s{Hh.S_RU}, 999")
    else: Hh.repack_address(p)
    build_srd(p, S_AF, P_WS, AF_BYTES)
    build_srd(p, S_WP, P_WS, WP_BYTES, add=WP_OFF)
    build_srd(p, S_OUT, P_OUT, S * D * 2)
    p(f"s_mov_b64 s[{S_DBG}:{S_DBG+1}], s[{P_DBG}:{P_DBG+1}]")
    npf = 0
    if USE_PF:
        PF.pf_setup(p, 1, H_PFS, S_FSTEP, S_FD)
        for k in range(PF.PF_DIST - 3):
            for kind, t in PF.pf_touch(H_PFS): p(t)
        npf = PF.PF_DIST - 3
    Hh.repack_prepare(p)
    if "norp" not in EXP and "norpw" not in EXP: Hh.repack_warm(p)
    for r in range(ACC, ACC + 112, 2): p(f"v_mov_b64 v[{r}:{r+1}], 0")
    for k, t in Q.addr_update(2): p(t)
    p(f"s_cmp_lt_u32 s{Hh.S_RU}, {KS_T * 5}")
    p(f"s_cselect_b32 s{S_ALTM}, {1 << (HOOK_FIN + 1)}, 0")
    if nwu: p(f"s_or_b32 s{S_ALTM}, s{S_ALTM}, 1")
    nrw = 0 if 'norp' in EXP or 'norpw' in EXP else 1
    p(f"s_waitcnt vmcnt({16 + npf + nwu + nrw})")
    p("s_barrier")
    if STD: fstamp(p, 2)
    p(f"s_mov_b32 s{S_HOOKM}, {(1 << HOOK_ISS) | (1 << HOOK_FIN) | ((1 << HOOK_SIG) if HOOK_SIG < NSTG else 0)}")
    for t, tag in Hh.h_reads(0, 0): p(t)
    nds = [0]
    def hook(pp):
        pp(f"s_bitcmp1_b32 s{S_HOOKM}, s{S_CNT}")
        pp("s_cbranch_scc1 L_h_hook")
        pp.label("L_h_hook_ret")
    def wait(pp, nd):
        nds[0] = nd
        pp(f"s_bitcmp1_b32 s{S_ALTM}, s{S_CNT}")
        pp("s_cbranch_scc1 L_h_alt")
        pp(f"s_waitcnt vmcnt({nd}) lgkmcnt(0)")
        pp.label("L_h_alt_ret")
    Q.gen_loop(p, "L_h_loop", 11, Hh.h_mfmas, Hh.h_reads, Hh.h_dmas(), Hh.HSTG, 64 * F * 2, False, 2, hook,
               PF.pf_touch(H_PFS) if USE_PF else None, wait)
    fstamp(p, 3)
    if "loopsonly" in EXP: p("s_branch L_diag_end")
    p("s_waitcnt vmcnt(0)")
    if HOOK_SIG >= NSTG:
        p("s_barrier")
        signal(p, DBG_WP * 4, "L_h_wp_sig2")
    poll_issue(p, DBG_WP * 4, V_PWH, "L_h_wp_iss")
    build_srd(p, S_AUX2, P_AX, S * D * 2)
    Hh.h_gate_issue(p)
    p("s_waitcnt lgkmcnt(0)")
    p(f"s_add_u32 s{P2.S_GS}, s{S_AF}, {G_OFF}")
    p(f"s_addc_u32 s{P2.S_GS+1}, s{S_AF+1}, 0")
    p(f"s_mov_b32 s{P2.S_GS+2}, {G_BYTES}")
    p(f"s_mov_b32 s{P2.S_GS+3}, 0x20000")
    p(f"s_cmp_ge_u32 s{S_W}, 2")
    p("s_cbranch_scc1 L_h_epi1")
    for ch in (0, 1):
        if ch == 1: p.label("L_h_epi1")
        def wp_check(pp):
            poll_check(pp, DBG_WP * 4, V_PWH, 17, 128, "L_wp_pollh", barrier=False)
        Hh.h_epilogue(p, ch, S_FD, wp_check if ch == 0 else None)
        p("s_branch L_h_done")
    p.label("L_h_alt")
    if nwu:
        p(f"s_cmp_lg_u32 s{S_CNT}, 0")
        p("s_cbranch_scc1 L_h_alt_rp")
        p(f"s_waitcnt vmcnt({min(63, nds[0] + nwu + npf + nrw)}) lgkmcnt(0)")
        p("s_branch L_h_alt_ret")
        p.label("L_h_alt_rp")
    p(f"s_waitcnt vmcnt({nds[0] + 8}) lgkmcnt(0)")
    p("s_branch L_h_alt_ret")
    p.label("L_h_hook")
    p(f"s_cmp_eq_u32 s{S_CNT}, {HOOK_SIG}")
    p("s_cbranch_scc1 L_h_hook_sig")
    p(f"s_cmp_eq_u32 s{S_CNT}, {HOOK_FIN}")
    p("s_cbranch_scc1 L_h_hook_fin")
    if "rpst" in EXP: fstamp(p, 1)
    Hh.repack_issue(p, "")
    if "rpst" in EXP: fstamp(p, 2)
    p("s_branch L_h_hook_ret")
    p.label("L_h_hook_fin")
    if "rpst" in EXP: fstamp(p, 4)
    Hh.repack_finish(p, "")
    if "rpst" in EXP: fstamp(p, 5)
    p("s_branch L_h_hook_ret")
    p.label("L_h_hook_sig")
    signal(p, DBG_WP * 4, "L_h_wp_sig")
    p("s_branch L_h_hook_ret")
    p.label("L_h_done")
    p("s_waitcnt vmcnt(12)")
    Hh.h_gate(p, P2.S_GS)
    if "mid" in EXP: fstamp(p, 4)
    p(f"s_mov_b32 s{S_ROLE}, 1")
    P2.p2_addr_setup(p)
    pre = P2.prefetch_list()
    npre = N_HPRE
    for g in pre[:npre]:
        for x in g: p(x)
    p(f"s_waitcnt vmcnt({npre})")
    if "mid" in EXP: fstamp(p, 5)
    p("s_barrier")
    p(f"s_lshl_b32 s{S_T0}, s{S_J}, 2")
    p(f"s_add_u32 s{S_T0}, s{S_T0}, {DBG_H * 4}")
    signal(p, f"s{S_T0}", "L_h_sig")
    phase2_entry_common(p, "h")
    if "mid" in EXP: fstamp(p, 1)
    P2.lds_setup(p)
    for g in pre[npre:] + P2.lds_prefetch_list():
        for x in g: p(x)
    P2.p2_zero(p)
    if "mid" in EXP: fstamp(p, 2)
    h_counter_offset(p, S_T1)
    wait_counter(p, f"s{S_T1}", 8, "L_p2_h_poll")

N_HPRE = int(os.environ.get("N_HPRE", "0"))
QHOOK = int(os.environ.get('QHOOK', '9'))
USE_PF = "nopf" not in EXP
USE_WU = "wu" in EXP
STD = "mid" not in EXP and "its" not in EXP and "rpst" not in EXP
N_EX = int(os.environ.get("N_EX", "18"))
S_ALTM = 59
HOOK_ISS, HOOK_FIN, HOOK_SIG = [int(x) for x in os.environ.get('HOOKS', '1,4,6').split(',')]
S_HOOKM = 57
H_PFS = 84
SPRINKLE_Q, SPRINKLE_H = int(os.environ.get('SPRQ', '7')), 9
CODE_BYTES = 30720
MIXED = "mixed" in EXP
P2MAP = os.environ.get("P2MAP", "B")

def gen_fused(p, name):
    kernel_head(p, name)
    p("s_cmp_ge_u32 s2, 256")
    p("s_cbranch_scc1 L_end")
    fstamp(p, 0)
    p(f"s_load_dwordx4 s[{P_AX}:{P_AX+3}], s[0:1], {KA_AX}")
    p(f"s_load_dwordx2 s[{P_WO}:{P_WO+1}], s[0:1], {KA_WO}")
    p(f"s_load_dwordx4 s[{P_W1}:{P_W1+3}], s[0:1], {KA_W1}")
    p(f"s_load_dwordx4 s[{P_W2}:{P_W2+3}], s[0:1], {KA_W2}")
    p(f"s_load_dwordx4 s[{P_GW}:{P_GW+3}], s[0:1], {KA_GW}")
    p(f"s_load_dwordx4 s[{P_DBG}:{P_DBG+3}], s[0:1], {KA_DBG}")
    p(f"v_and_b32 v{V_LANE}, 63, v0")
    p("v_lshrrev_b32 v2, 6, v0")
    p("s_and_b32 s3, s2, 7")
    p(f"s_lshr_b32 s{S_T1}, s2, 3")
    p(f"v_readfirstlane_b32 s{S_W}, v2")
    if MIXED:
        p(f"s_lshr_b32 s{S_J}, s3, 1")
        p(f"s_lshl_b32 s{S_J}, s{S_J}, 2")
        p(f"s_lshr_b32 s{S_T0}, s{S_T1}, 2")
        p(f"s_and_b32 s{S_T0}, s{S_T0}, 3")
        p(f"s_add_u32 s{S_J}, s{S_J}, s{S_T0}")
        p(f"s_and_b32 s{S_I}, s3, 1")
    else:
        p(f"s_and_b32 s{S_T2}, s3, 3")
        p(f"s_lshr_b32 s{S_J}, s{S_T2}, 1")
        p(f"s_lshl_b32 s{S_J}, s{S_J}, 3")
        p(f"s_lshr_b32 s{S_T0}, s{S_T1}, 2")
        p(f"s_add_u32 s{S_J}, s{S_J}, s{S_T0}")
        p(f"s_and_b32 s{S_I}, s{S_T2}, 1")
    p(f"s_lshl_b32 s{S_I}, s{S_I}, 2")
    p(f"s_and_b32 s{S_T0}, s{S_T1}, 3")
    p(f"s_add_u32 s{S_I}, s{S_I}, s{S_T0}")
    if P2MAP == "A":
        p(f"s_lshr_b32 s{S_R2}, s{S_T1}, 3")
        p(f"s_lshl_b32 s{S_T0}, s3, 2")
        p(f"s_add_u32 s{S_R2}, s{S_R2}, s{S_T0}")
        p(f"s_and_b32 s{S_N2}, s{S_T1}, 7")
    else:
        p(f"s_lshr_b32 s{S_R2}, s3, 1")
        p(f"s_lshl_b32 s{S_R2}, s{S_R2}, 3")
        p(f"s_lshr_b32 s{S_T0}, s{S_T1}, 2")
        p(f"s_add_u32 s{S_R2}, s{S_R2}, s{S_T0}")
        p(f"s_and_b32 s{S_N2}, s3, 1")
        p(f"s_lshl_b32 s{S_N2}, s{S_N2}, 2")
        p(f"s_and_b32 s{S_T0}, s{S_T1}, 3")
        p(f"s_add_u32 s{S_N2}, s{S_N2}, s{S_T0}")
    if "nopfc" not in EXP: PF.pf_code(p, name, f"L_end-{name}")
    if MIXED: p(f"s_cmp_ge_u32 s2, 128")
    else: p("s_cmp_ge_u32 s3, 4")
    p("s_cbranch_scc1 L_role_h")
    gen_role_q(p)
    gen_role_h(p)
    p.label("L_phase2")
    if "mid" in EXP: fstamp(p, 6)
    P2.p2_main(p, 6)
    if STD: fstamp(p, 6)
    P2.p2_final(p)
    if "delay" in EXP:
        p("s_memtime s[4:5]")
        p("s_waitcnt lgkmcnt(0)")
        p("s_add_u32 s6, s4, 20000")
        p.label("L_delay")
        p("s_memtime s[8:9]")
        p("s_waitcnt lgkmcnt(0)")
        p("s_sub_u32 s8, s8, s6")
        p("s_cmp_lt_i32 s8, 0")
        p("s_cbranch_scc1 L_delay")
    p.label("L_diag_end")
    if "dbgtime" in EXP:
        p("s_waitcnt vmcnt(0)"); fstamp(p, 7)
    if common.DIAG: flush_stamps(p)
    p.label("L_end")
    p("s_endpgm")
    p(KD.format(name=name, vgpr=512, sgpr=102, acc=256))

def flush_stamps(p):
    p("s_waitcnt vmcnt(0) lgkmcnt(0)")
    p(f"{'s_memtime' if common.CYC else 's_memrealtime'} s[16:17]")
    p("s_waitcnt lgkmcnt(0)")
    p(f"s_add_u32 s20, s{S_AF}, {common.STAMP_OFF}")
    p(f"s_addc_u32 s21, s{S_AF+1}, 0")
    p("s_mov_b32 s22, 0x100000"); p("s_mov_b32 s23, 0x20000")
    p(f"s_lshl_b32 s24, s2, 2"); p(f"s_add_u32 s24, s24, s{S_W}"); p("s_lshl_b32 s24, s24, 7")
    for i, r in enumerate(STAMPS + [16]):
        p(f"v_mov_b32 v2, s{r}"); p(f"v_mov_b32 v3, s{r+1}"); p("v_mov_b32 v4, s24")
        p(f"buffer_store_dwordx2 v[2:3], v4, s[20:23], 0 offen offset:{8 * i}")
        p("s_waitcnt vmcnt(0)")

def build(path):
    p = Prog()
    head = open("cdna_kernels/%s.s.ref" % NAME).read().split("; Override launch geometry")[0].rstrip("\n").split("\n")
    head.append("; Override launch geometry by editing the next line (default: block=256,")
    head.append("; @launch grid=(256,1,1) block=(256,1,1) lds=%d" % LDS_BYTES)
    p('.amdgcn_target "amdgcn-amd-amdhsa--gfx950"'); p(".text")
    gen_fused(p, NAME + "_kernel")
    body, n = pad_hazards_fast(p.lines)
    open(path, "w").write("\n".join(head + body) + "\n")
    print("written", path, "nops", n, "lines", len(body))

if __name__ == "__main__":
    args = sys.argv[1:]
    if "--diag" in args: common.DIAG = True; args.remove("--diag")
    if "--cyc" in args: common.CYC = True; args.remove("--cyc")
    build(args[0] if args else "fused.s")
```
